```python
import torch

def _softmax(x, axis=-1):
    return torch.softmax(x, dim=axis)

def _gelu(x):
    return torch.nn.functional.gelu(x, approximate='tanh')

def _silu(x):
    return torch.nn.functional.silu(x)

def _sigmoid(x):
    return torch.sigmoid(x)

def _layernorm(x, axis=-1, eps=1e-05):
    m = x.mean(dim=axis, keepdim=True)
    v = x.var(dim=axis, keepdim=True, unbiased=False)
    return (x - m) / torch.sqrt(v + eps)

def _scatter_add(tgt, idx, src, axis=0):
    return tgt.clone().index_add_(axis, idx, src)

def _segment_sum(src, seg, n):
    out = torch.zeros((n,) + src.shape[1:], dtype=src.dtype)
    return out.index_add_(0, seg, src)

def _pad(x, pw):
    flat = tuple((v for pair in reversed(pw) for v in pair))
    return torch.nn.functional.pad(x, flat)
kernel_name = 'adaLN_cond__mha_block_cached__glu_gated_reglu__prompt'

def setup_inputs():

    _w = lambda a: (lambda t: t.to(torch.bfloat16) if t.is_floating_point() else t)(torch.as_tensor(a))

    def _A_setup():
        B, Sq, D = (1, 2048, 640)
        H, Sk, Dh = (32, 2048, 128)
        return {'x': _w((lambda *s: torch.randn(*s, dtype=torch.bfloat16) * 0.05)(B, Sq, D)), 'k_cache': _w((lambda *s: torch.randn(*s, dtype=torch.bfloat16) * 1.6)(B, H, Sk, Dh)), 'v_cache': _w((lambda *s: torch.randn(*s, dtype=torch.bfloat16) * 0.8)(B, H, Sk, Dh)), 'wq': _w((lambda *s: torch.randn(*s, dtype=torch.bfloat16) * 1.6)(D, H * Dh) * D ** (-0.5)), 'wo': _w((lambda *s: torch.randn(*s, dtype=torch.bfloat16) * 0.8)(H * Dh, D) * (H * Dh) ** (-0.5))}
    _A_in = _A_setup()

    def _B_setup():
        B, S, D, F = (1, 2048, 640, 1728)
        return {'x': _w((lambda *s: torch.randn(*s, dtype=torch.bfloat16) * 0.05)(B, S, D)), 'W_gate': _w((lambda *s: torch.randn(*s, dtype=torch.bfloat16) * 0.4)(D, F) * (2.0 / D) ** 0.5), 'W_up': _w((lambda *s: torch.randn(*s, dtype=torch.bfloat16) * 0.4)(D, F) * (2.0 / D) ** 0.5), 'W_down': _w((lambda *s: torch.randn(*s, dtype=torch.bfloat16) * 0.4)(F, D) * (1.0 / F) ** 0.5)}
    _B_in = _B_setup()
    return {'A_x': _A_in['x'], 'A_k_cache': _A_in['k_cache'], 'A_v_cache': _A_in['v_cache'], 'A_wq': _A_in['wq'], 'A_wo': _A_in['wo'], 'B_x': _B_in['x'], 'B_W_gate': _B_in['W_gate'], 'B_W_up': _B_in['W_up'], 'B_W_down': _B_in['W_down'], 'c': _w((lambda *s: torch.randn(*s, dtype=torch.bfloat16) * 0.2)(1, 640) * 8.0), 'w_mod': _w((lambda *s: torch.randn(*s, dtype=torch.bfloat16) * 0.2)(640, 6 * 640) * 640 ** (-0.5) * 8.0)}

def reference(A_x, A_k_cache, A_v_cache, A_wq, A_wo, B_x, B_W_gate, B_W_up, B_W_down, c, w_mod):

    def _A_ref(x, k_cache, v_cache, wq, wo):
        B, Sq, D = x.shape
        H, Dh = (32, 128)
        q = (lambda x, *d: x.permute(*d))((x @ wq).reshape(B, Sq, H, Dh), 0, 2, 1, 3)
        scores = torch.einsum('bhqd,bhkd->bhqk', q, k_cache) * Dh ** (-0.5)
        p = _softmax(scores, axis=-1)
        o = torch.einsum('bhqk,bhkd->bhqd', p, v_cache)
        return (lambda x, *d: x.permute(*d))(o, 0, 2, 1, 3).reshape(B, Sq, H * Dh) @ wo

    def _B_ref(x, W_gate, W_up, W_down):
        gate = torch.einsum('bsd,df->bsf', x, W_gate)
        up = torch.einsum('bsd,df->bsf', x, W_up)
        gate = gate * (lambda x, dt: x.to(dt))(gate > 0, gate.dtype)
        h = gate * up
        return torch.einsum('bsf,fd->bsd', h, W_down)
    x = A_x
    mod = (_silu(c) @ w_mod).reshape(c.shape[0], 6, 1, -1)
    sa, ca, ga, sb, cb, gb = (mod[:, 0].clone(), mod[:, 1].clone(), mod[:, 2].clone(), mod[:, 3].clone(), mod[:, 4].clone(), mod[:, 5].clone())
    h = _layernorm(x, axis=-1) * (1 + ca) + sa
    x = x + ga * _A_ref(h, A_k_cache, A_v_cache, A_wq, A_wo)
    h = _layernorm(x, axis=-1) * (1 + cb) + sb
    x = x + gb * _B_ref(h, B_W_gate, B_W_up, B_W_down)
    return x
```

```python
import re

def v(i, n=1):
    return f"v{i}" if n == 1 else f"v[{i}:{i+n-1}]"
def a(i, n=1):
    return f"a{i}" if n == 1 else f"a[{i}:{i+n-1}]"
def s(i, n=1):
    return f"s{i}" if n == 1 else f"s[{i}:{i+n-1}]"

_REG = re.compile(r"^-?\|?(?:abs\()?([vas])(?:(\d+)|\[(\d+):(\d+)\])\)?\|?$")

def regs_of(tok):
    tok = tok.strip()
    if tok in ("vcc", "vcc_lo", "vcc_hi"):
        return {("s", "vcc")}
    if tok == "m0":
        return {("s", "m0")}
    if tok in ("exec",):
        return {("s", "exec")}
    m = _REG.match(tok)
    if not m:
        return set()
    f = m.group(1)
    if m.group(2) is not None:
        return {(f, int(m.group(2)))}
    return {(f, i) for i in range(int(m.group(3)), int(m.group(4)) + 1)}

def split_ops(rest):
    ops, depth, cur = [], 0, ""
    for ch in rest:
        if ch in "[(":
            depth += 1
        if ch in "])":
            depth -= 1
        if ch == "," and depth == 0:
            ops.append(cur.strip()); cur = ""
        else:
            cur += ch
    if cur.strip():
        ops.append(cur.strip())
    out = []
    for o in ops:
        out.append(o.split()[0] if o else o)
    return out

TRANS = ("v_exp_f32", "v_log_f32", "v_rcp_f32", "v_rsq_f32", "v_sqrt_f32", "v_sin_f32", "v_cos_f32", "v_rcp_iflag_f32")

class Ins:
    def __init__(self, text):
        self.text = text
        t = text.split(";")[0].strip()
        self.label = t.endswith(":")
        self.directive = t.startswith(".") and not self.label
        self.mn = ""
        self.defs, self.uses = set(), set()
        self.kind = "none"
        self.srcc = set(); self.srcab = set()
        self.states = 1
        if not t or self.label or self.directive:
            self.states = 0
            return
        parts = t.split(None, 1)
        mn = self.mn = parts[0]
        rest = parts[1] if len(parts) > 1 else ""
        ops = split_ops(rest)
        R = [regs_of(o) for o in ops]
        base = mn.replace("_e32", "").replace("_e64", "").replace("_dpp", "").replace("_sdwa", "")
        self.base = base
        self.dpp = ("_dpp" in mn) or ("row_" in rest) or ("quad_perm" in rest)
        if mn.startswith("v_mfma"):
            self.kind = "mfma"
            self.passes = 8 if "32x32x16" in mn else 4
            self.defs = R[0]; self.srcab = R[1] | R[2]; self.srcc = R[3]; self.uses = self.srcab | self.srcc
        elif mn.startswith("v_"):
            self.kind = "valu"
            if base.startswith("v_cmp"):
                self.defs = R[0]; self.uses = set().union(*R[1:])
                if base.startswith("v_cmpx"): self.defs |= {("s", "exec")}
            elif base in ("v_permlane32_swap_b32", "v_permlane16_swap_b32", "v_swap_b32"):
                self.defs = R[0] | R[1]; self.uses = R[0] | R[1]
            elif base in ("v_add_co_u32", "v_sub_co_u32", "v_addc_co_u32", "v_subb_co_u32"):
                self.defs = R[0] | R[1]; self.uses = set().union(*R[2:])
            else:
                self.defs = R[0]; self.uses = set().union(*R[1:]) if len(R) > 1 else set()
                if base in ("v_fmac_f32", "v_dot2c_f32_bf16", "v_writelane_b32") or self.dpp:
                    self.uses |= R[0]
                if base == "v_cndmask_b32" and len(R) == 3: self.uses |= {("s", "vcc")}
        elif mn.startswith("ds_"):
            self.kind = "ds"
            if "read" in mn or "permute" in mn or "swizzle" in mn:
                self.defs = R[0]; self.uses = set().union(*R[1:])
            else:
                self.uses = set().union(*R)
        elif mn.startswith("buffer_") or mn.startswith("global_"):
            self.kind = "vmem"
            self.lds = (" lds" in rest) or ("_lds_" in mn)
            if mn in ("buffer_wbl2", "buffer_inv"):
                pass
            elif self.lds:
                self.uses = set().union(*R) | {("s", "m0")}
            elif "load" in mn:
                self.defs = R[0]; self.uses = set().union(*R[1:])
            else:
                self.uses = set().union(*R)
                self.wide_store = ("x4" in mn or "x3" in mn)
                if mn.startswith("buffer_"): self.sdata = R[0]
                else: self.sdata = R[1]
                if "atomic" in mn and "sc0" in rest and mn.startswith("buffer_"):
                    self.defs = R[0]
        elif mn.startswith("s_"):
            self.kind = "salu"
            if mn == "s_nop":
                self.states = int(ops[0], 0) + 1
            elif mn.startswith(("s_waitcnt", "s_barrier", "s_branch", "s_cbranch", "s_endpgm", "s_setprio", "s_sleep")):
                pass
            elif mn.startswith("s_cmp") or mn.startswith("s_bitcmp"):
                self.uses = set().union(*R)
            else:
                self.defs = R[0]; self.uses = set().union(*R[1:]) if len(R) > 1 else set()
                if "saveexec" in mn: self.defs |= {("s", "exec")}

def vec(rs):
    return {r for r in rs if r[0] in "va"}
def sc(rs):
    return {r for r in rs if r[0] == "s"}

def required(p, c):
    need = 0
    if p.kind == "valu":
        pd = vec(p.defs)
        if c.kind == "mfma" and pd & c.uses: need = max(need, 2)
        if c.kind == "valu":
            if p.base in TRANS and c.base not in TRANS and pd & c.uses: need = max(need, 1)
            if c.base.startswith("v_permlane") and pd & c.uses: need = max(need, 2)
            if c.dpp and pd & c.uses: need = max(need, 2)
            if c.base in ("v_readlane_b32", "v_readfirstlane_b32") and pd & c.uses: need = max(need, 1)
            if sc(p.defs) & sc(c.uses): need = max(need, 4 if c.base in ("v_readlane_b32", "v_writelane_b32") else 2)
            if ("op_sel" in p.text and "fma_mix_f32" not in p.text or "dst_sel:WORD" in p.text) and pd & (c.uses | c.defs): need = max(need, 1)
            if ("s", "exec") in p.defs and (c.dpp): need = max(need, 5)
            if ("s", "exec") in p.defs and c.base in ("v_readlane_b32", "v_readfirstlane_b32", "v_writelane_b32"): need = max(need, 4)
        if c.kind == "vmem" and sc(p.defs) & sc(c.uses): need = max(need, 5)
        if c.kind == "mfma" and ("s", "exec") in p.defs: need = max(need, 4)
    if p.kind == "mfma":
        P = p.passes
        if c.kind == "mfma":
            if p.defs & c.srcab: need = max(need, {4: 8, 8: 12}[P])
            if p.defs & c.srcc and not (p.defs == c.srcc and c.passes == P): need = max(need, {4: 6, 8: 10}[P])
            if p.defs & c.defs and not (p.defs & c.srcc): need = max(need, {4: 6, 8: 10}[P])
        elif c.kind in ("valu", "ds", "vmem"):
            if p.defs & (c.uses | c.defs): need = max(need, {4: 8, 8: 12}[P])
            if c.kind == "valu" and p.srcc & c.defs: need = max(need, {4: 3, 8: 7}[P])
    if p.kind == "salu" and ("s", "m0") in p.defs and c.kind == "vmem" and getattr(c, "lds", False): need = max(need, 1)
    if p.kind == "vmem" and getattr(p, "wide_store", False):
        if c.kind == "valu" and p.sdata & c.defs: need = max(need, 2)
        elif p.sdata & c.defs: need = max(need, 1)
    return need

def check_hazards(lines, name=""):
    ins = [Ins(l) for l in lines]
    labels = {i.text.split(";")[0].strip()[:-1]: k for k, i in enumerate(ins) if i.label}
    errs = []
    W = 14
    def walk(pk, k, dist, seen):
        p = ins[pk]
        while k < len(ins) and dist < W:
            c = ins[k]
            if c.states:
                n = required(p, c)
                if n > dist:
                    errs.append(f"{name}: need {n} states, have {dist}: [{pk}] {p.text.strip()}  ->  [{k}] {c.text.strip()}")
                if c.mn.startswith("s_cbranch") or c.mn == "s_branch":
                    tgt = c.text.split(";")[0].split()[1]
                    if tgt in labels and (k, dist) not in seen:
                        seen.add((k, dist))
                        walk(pk, labels[tgt], dist + 1, seen)
                    if c.mn == "s_branch": return
                if c.mn == "s_endpgm": return
                dist += c.states
            k += 1
    for k, p in enumerate(ins):
        if p.kind in ("valu", "mfma", "vmem") or (p.kind == "salu" and ("s", "m0") in p.defs):
            walk(k, k + 1, 0, set())
    return errs

class Asm:
    def __init__(self):
        self.lines = []
    def __call__(self, text):
        for l in text.split("\n"):
            if l.strip():
                self.lines.append("    " + l.strip())
    def label(self, name):
        self.lines.append(name + ":")
    def c(self, text):
        self.lines.append("    ; " + text)
    def extend(self, lst):
        for l in lst: self(l)

def srd(A, base, ptr, nbytes, off_lo=None):
    A(f"s_mov_b32 s{base}, s{ptr}")
    A(f"s_and_b32 s{base+1}, s{ptr+1}, 0xffff")
    A(f"s_mov_b32 s{base+2}, {nbytes}")
    A(f"s_mov_b32 s{base+3}, 0x20000")

def kernel_text(name, lines, vgpr, accum, sgpr=96):
    head = [f".globl {name}", ".p2align 8", f".type {name},@function", f"{name}:"]
    return "\n".join(head + lines) + "\n"

def kernel_desc(name, vgpr, accum, sgpr=96):
    return f""".amdhsa_kernel {name}
  .amdhsa_next_free_vgpr {vgpr}
  .amdhsa_next_free_sgpr {sgpr}
  .amdhsa_accum_offset {accum}
  .amdhsa_group_segment_fixed_size 0
  .amdhsa_kernarg_size 112
  .amdhsa_user_sgpr_count 2
  .amdhsa_user_sgpr_kernarg_segment_ptr 1
  .amdhsa_system_sgpr_workgroup_id_x 1
  .amdhsa_float_denorm_mode_32 3
.end_amdhsa_kernel
"""

def build_file(header, kernels):
    out = list(header)
    for k in kernels:
        out.append(f"; @launch kernel={k['name']} grid=({k['grid']},1,1) block=({k['block']},1,1) lds={k['lds']}")
    out.append('.amdgcn_target "amdgcn-amd-amdhsa--gfx950"')
    out.append(".text")
    seen = set()
    for k in kernels:
        if k["name"] in seen: continue
        seen.add(k["name"])
        errs = check_hazards(k["lines"], k["name"])
        if errs:
            raise RuntimeError("hazards:\n" + "\n".join(errs[:40]))
        out.append(kernel_text(k["name"], k["lines"], k["vgpr"], k["accum"]))
    out.append('.section .rodata,"a"')
    seen = set()
    for k in kernels:
        if k["name"] in seen: continue
        seen.add(k["name"])
        out.append(".p2align 6")
        out.append(kernel_desc(k["name"], k["vgpr"], k["accum"], k.get("sgpr", 96)))
    return "\n".join(out)
```

```python
from asmlib import *
import math, struct
KA = dict(x=0, k=8, v=16, wq=24, wo=32, bx=40, wg=48, wu=56, wd=64, c=72, wmod=80, out=88, dbg=96, ws=104)
WS_XH  = 0x000000
WS_GS1 = 0x280000
WS_MOD = 0x282000
WS_G2S2 = 0x286000
WS_UT  = 0x288000
WS_ST  = 0x290000
WS_Y   = 0x1400000
WS_X1  = 0x1700000
WS_H2  = 0x1D00000
WS_O   = 0x400000
WS_END = 0x4000000
WS_STAMP = 0x3000000
QSCALE = math.log2(math.e) / math.sqrt(128.0)
def fbits(x): return "0x%08x" % struct.unpack("<I", struct.pack("<f", x))[0]

class VM:
    def __init__(self): self.q = []
    def issue(self, tag): self.q.append(tag)
    def need(self, *tags):
        last = max((i for i, t in enumerate(self.q) if t in tags), default=None)
        if last is None: return None
        n = len(self.q) - 1 - last
        self.q = self.q[last + 1:]
        return n

def emit_gaps(A, mf, gaps):
    assert len(mf) == len(gaps)
    for m, g in zip(mf, gaps):
        if m: A(m)
        for x in g: A(x)

def code_prefetch(A, start_label, nbytes, vtmp, vdst, sp, nthreads=256):
    A(f"s_getpc_b64 s[{sp}:{sp+1}]")
    A(f"v_lshlrev_b32 v{vtmp}, 6, v0")
    span = nthreads * 64
    n = (nbytes + span - 1) // span
    for j in range(n):
        A(f"global_load_dword v{vdst}, v{vtmp}, s[{sp}:{sp+1}]")
        if j + 1 < n: A(f"v_add_u32 v{vtmp}, {span}, v{vtmp}")
    return n

def stamp(A, idx, on, srd_ws, s_slot, stmp, vt):
    if not on: return
    A(f"s_memrealtime s[{stmp}:{stmp+1}]")
    A("s_waitcnt lgkmcnt(0)")
    A(f"s_mov_b32 s{stmp+2+idx}, s{stmp}")

def fill(n, scal, mem, valu, start=0):
    cost = [sum(2 if x.startswith("buffer") else 1 for x in mem.get(g, [])) for g in range(n)]
    total = sum(c for _, c, *r in valu)
    free = sum(max(0, 2 - cost[g]) for g in range(start, n))
    over = max(0, total - free)
    cap = [2] * n
    cand = [g for g in range(start, n) if cost[g] < 2] or list(range(start, n))
    while over > 0:
        m = min(over, len(cand))
        for i in range(m): cap[cand[(i * len(cand)) // m]] += 1
        over -= m
    gaps = [list(scal.get(g, [])) + list(mem.get(g, [])) for g in range(n)]
    g = start
    left = []
    for it in valu:
        t, c = it[0], it[1]
        e = it[2] if len(it) > 2 else 0
        g = max(g, e)
        while g < n and cost[g] + c > cap[g]: g += 1
        if g >= n: left.append(t); continue
        gaps[g].append(t); cost[g] += c
    return gaps, left

def stamp_out(A, kidx, n, srd, swave):
    A("s_lshl_b32 s3, s2, 2"); A(f"s_add_u32 s3, s3, s{swave}"); A("s_lshl_b32 s3, s3, 6"); A(f"s_add_u32 s3, s3, {WS_STAMP + 0x10000*kidx}")
    A("v_mov_b32 v1, 0")
    for i in range(n):
        A(f"v_mov_b32 v2, s{62+i}")
        A(f"buffer_store_dword v2, v1, s[{srd}:{srd+3}], s3 offen offset:{4*i}")

def ln_stats(A, st, t0, mu, sig, want="sig"):
    o = []
    o.append(f"v_add_f32 v{st}, v{st}, v{st+2}")
    o.append(f"v_add_f32 v{st+1}, v{st+1}, v{st+3}")
    for swp in ("v_permlane32_swap_b32", "v_permlane16_swap_b32"):
        o.append(f"v_mov_b32 v{st+2}, v{st}")
        o.append(f"v_mov_b32 v{st+3}, v{st+1}")
        o.append("s_nop 0")
        o.append(f"{swp} v{st+2}, v{st}")
        o.append(f"{swp} v{st+3}, v{st+1}")
        o.append(f"v_add_f32 v{st}, v{st}, v{st+2}")
        o.append(f"v_add_f32 v{st+1}, v{st+1}, v{st+3}")
    o.append(f"v_mul_f32 v{mu}, {fbits(-1/640)}, v{st}")
    o.append(f"v_mul_f32 v{st+1}, {fbits(1/640)}, v{st+1}")
    o.append(f"v_fma_f32 v{st+1}, -v{mu}, v{mu}, v{st+1}")
    o.append(f"v_max_f32 v{st+1}, 0, v{st+1}")
    o.append(f"v_add_f32 v{st+1}, {fbits(1e-5)}, v{st+1}")
    o.append(f"v_sqrt_f32 v{sig}, v{st+1}" if want == "sig" else f"v_rcp_f32 v{sig}, v{st+1}")
    return o
```

```python
from common import *

def gen_k0(stamps=False):
    A = Asm()
    A("s_cmp_ge_u32 s2, 248")
    A("s_cbranch_scc1 K0_end")
    A(f"s_load_dwordx2 s[4:5], s[0:1], {KA['ws']}")
    A("s_cmp_ge_u32 s2, 120")
    A("s_cbranch_scc1 K0_ln")
    A(f"s_load_dwordx4 s[8:11], s[0:1], {KA['c']}")
    A("v_lshrrev_b32 v1, 2, v0")
    A("v_and_b32 v2, 3, v0")
    A("v_mul_u32_u24 v3, 20, v1")
    A("s_mov_b32 s3, 76800")
    A("v_mul_lo_u32 v4, s3, v1")
    A("v_lshl_add_u32 v4, v2, 4, v4")
    A("s_lshl_b32 s3, s2, 6")
    A("v_add_u32 v4, s3, v4")
    A("s_waitcnt lgkmcnt(0)")
    srd(A, 12, 8, 1280)
    srd(A, 16, 10, 640 * 3840 * 2)
    srd(A, 20, 4, WS_END)
    A("buffer_load_dwordx4 v[8:11], v3, s[12:15], 0 offen")
    A("buffer_load_dword v12, v3, s[12:15], 0 offen offset:16")
    for j in range(10):
        A(f"s_mov_b32 s24, {7680*j}")
        A(f"buffer_load_dwordx4 v[{32+4*j}:{35+4*j}], v4, s[16:19], s24 offen")
    for j in range(8): A(f"v_mov_b32 v{72+j}, 0")
    A("s_waitcnt vmcnt(10)")
    for j in range(10):
        src = 8 + j // 2
        A(f"v_lshlrev_b32 v{16+j}, 16, v{src}" if j % 2 == 0 else f"v_and_b32 v{16+j}, 0xffff0000, v{src}")
    for j in range(10): A(f"v_mul_f32 v{80+j}, {fbits(-math.log2(math.e))}, v{16+j}")
    for j in range(10): A(f"v_exp_f32 v{80+j}, v{80+j}")
    for j in range(10): A(f"v_add_f32 v{80+j}, 1.0, v{80+j}")
    for j in range(10): A(f"v_rcp_f32 v{80+j}, v{80+j}")
    for j in range(10): A(f"v_mul_f32 v{16+j}, v{16+j}, v{80+j}")
    for j in range(10): A(f"v_cvt_pk_bf16_f32 v{16+j}, v{16+j}, v{16+j}")
    for j in range(10): A(f"v_and_b32 v{16+j}, 0xffff0000, v{16+j}")
    for j in range(10):
        A(f"s_waitcnt vmcnt({9-j})")
        for r in range(4):
            w = 32 + 4*j + r
            A(f"v_lshlrev_b32 v28, 16, v{w}")
            A(f"v_and_b32 v29, 0xffff0000, v{w}")
            A(f"v_fmac_f32 v{72+2*r}, v{16+j}, v28")
            A(f"v_fmac_f32 v{73+2*r}, v{16+j}, v29")
    A("s_nop 1")
    for sh in (4, 8):
        for j in range(8): A(f"v_add_f32_dpp v{72+j}, v{72+j}, v{72+j} row_ror:{sh} row_mask:0xf bank_mask:0xf")
    A("v_lshrrev_b32 v5, 4, v0")
    A("v_lshlrev_b32 v5, 7, v5")
    A("v_lshl_add_u32 v5, v2, 5, v5")
    A("ds_write_b128 v5, v[72:75]")
    A("ds_write_b128 v5, v[76:79] offset:16")
    A("s_waitcnt lgkmcnt(0)")
    A("s_barrier")
    A("v_cmp_gt_u32 vcc, 32, v0")
    A("s_and_saveexec_b64 s[26:27], vcc")
    A("s_cbranch_execz K0_end")
    A("v_lshlrev_b32 v5, 2, v0")
    for j in range(16): A(f"ds_read_b32 v{32+j}, v5 offset:{128*j}")
    A("s_mul_i32 s28, s2, 3277")
    A("s_lshr_b32 s28, s28, 16")
    A("s_mul_i32 s29, s28, 20")
    A("s_sub_u32 s29, s2, s29")
    A("s_lshl_b32 s29, s29, 5")
    A("v_add_u32 v6, s29, v0")
    A("s_cmp_eq_u32 s28, 1")
    A("s_cselect_b32 s30, 1.0, 0")
    A("s_cmp_eq_u32 s28, 4")
    A("s_cselect_b32 s30, 1.0, s30")
    A("s_waitcnt lgkmcnt(0)")
    for st in (8, 4, 2, 1):
        for j in range(st): A(f"v_add_f32 v{32+j}, v{32+j}, v{32+j+st}")
    A("v_cvt_pk_bf16_f32 v32, v32, v32")
    A("v_and_b32 v32, 0xffff0000, v32")
    A("v_add_f32 v32, s30, v32")
    A("v_cvt_pk_bf16_f32 v32, v32, v32")
    A("v_and_b32 v32, 0xffff0000, v32")
    A("s_lshl_b32 s31, s2, 7")
    A(f"s_add_u32 s31, s31, {WS_MOD}")
    A("buffer_store_dword v32, v5, s[20:23], s31 offen")
    A("s_sub_u32 s3, 4, s28")
    A("s_cmp_gt_u32 s3, 1")
    A("s_cbranch_scc1 K0_m2")
    A("s_mul_i32 s3, s3, 1280")
    A(f"s_add_u32 s3, s3, {WS_G2S2}")
    A("v_lshlrev_b32 v7, 1, v6")
    A("v_lshrrev_b32 v33, 16, v32")
    A("buffer_store_short v33, v7, s[20:23], s3 offen")
    A.label("K0_m2")
    A("s_cmp_ge_u32 s28, 2")
    A("s_cbranch_scc1 K0_end")
    A(f"v_mul_f32 v33, {fbits(QSCALE)}, v32")
    A("v_lshrrev_b32 v7, 3, v6")
    A("v_lshlrev_b32 v7, 6, v7")
    A("v_and_b32 v6, 7, v6")
    A("v_lshl_add_u32 v7, v6, 2, v7")
    A("s_cmp_eq_u32 s28, 0")
    A(f"s_cselect_b32 s31, {WS_GS1+32}, {WS_GS1}" if False else f"s_cselect_b32 s31, 32, 0")
    A(f"s_add_u32 s31, s31, {WS_GS1}")
    A("buffer_store_dword v33, v7, s[20:23], s31 offen")
    A("s_endpgm")
    A.label("K0_ln")
    A(f"s_load_dwordx2 s[8:9], s[0:1], {KA['x']}")
    A("s_sub_u32 s3, s2, 120")
    A("v_lshrrev_b32 v1, 4, v0")
    A("v_and_b32 v2, 15, v0")
    A("v_mul_u32_u24 v3, 1280, v1")
    A("v_lshl_add_u32 v3, v2, 4, v3")
    A("s_mul_i32 s24, s3, 20480")
    A("v_lshlrev_b32 v4, 8, v2")
    A("v_lshl_add_u32 v4, v1, 4, v4")
    A("s_waitcnt lgkmcnt(0)")
    srd(A, 12, 8, 2048 * 640 * 2)
    srd(A, 20, 4, WS_END)
    for j in range(5): A(f"buffer_load_dwordx4 v[{8+4*j}:{11+4*j}], v3, s[12:15], s24 offen offset:{256*j}")
    X = 32
    for j in range(5):
        A(f"s_waitcnt vmcnt({4-j})")
        for r in range(4):
            w = 8 + 4*j + r
            A(f"v_lshlrev_b32 v{X+8*j+2*r}, 16, v{w}")
            A(f"v_and_b32 v{X+8*j+2*r+1}, 0xffff0000, v{w}")
    def reduce16(reg):
        for sh in (1, 2, 4, 8):
            A("s_nop 1")
            A(f"v_add_f32_dpp v{reg}, v{reg}, v{reg} row_ror:{sh} row_mask:0xf bank_mask:0xf")
    for j in range(4): A(f"v_add_f32 v{72+j}, v{X+j}, v{X+4+j}")
    for e in range(8, 40): A(f"v_add_f32 v{72+e%4}, v{72+e%4}, v{X+e}")
    A("v_add_f32 v72, v72, v73"); A("v_add_f32 v74, v74, v75"); A("v_add_f32 v72, v72, v74")
    reduce16(72)
    A(f"v_mul_f32 v72, {fbits(1/640)}, v72")
    for e in range(40): A(f"v_sub_f32 v{X+e}, v{X+e}, v72")
    for j in range(4): A(f"v_mul_f32 v{76+j}, v{X+j}, v{X+j}")
    for e in range(4, 40): A(f"v_fmac_f32 v{76+e%4}, v{X+e}, v{X+e}")
    A("v_add_f32 v76, v76, v77"); A("v_add_f32 v78, v78, v79"); A("v_add_f32 v76, v76, v78")
    reduce16(76)
    A(f"v_mov_b32 v77, {fbits(1e-5)}")
    A(f"v_fmac_f32 v77, {fbits(1/640)}, v76")
    A("v_rsq_f32 v77, v77")
    A("s_nop 0")
    for e in range(40): A(f"v_mul_f32 v{X+e}, v{X+e}, v77")
    for j in range(5):
        for r in range(4): A(f"v_cvt_pk_f16_f32 v{8+4*j+r}, v{X+8*j+2*r}, v{X+8*j+2*r+1}")
        A(f"s_add_u32 s25, s24, {WS_XH + 4096*j}")
        A(f"buffer_store_dwordx4 v[{8+4*j}:{11+4*j}], v4, s[20:23], s25 offen")
    A.label("K0_end")
    A("s_endpgm")
    return dict(name="prep_kernel", lines=A.lines, vgpr=96, accum=96, sgpr=40, grid=248, block=256, lds=2048)
```

```python
from common import *

MF = "v_mfma_f32_16x16x32_bf16"
def QF(qg, ks): return 8 * (qg * 4 + ks)
def QA(db, qg): return 8 * (qg * 4 + (db >> 1)) + 4 * (db & 1)
def ST(buf, kb, qg): return 8 * (qg * 4 + buf * 2 + kb) + 4
def RING(kk, qg): return 128 + (kk % 6) * 16 + qg * 4
def PF(pb, c, qg): return 128 + pb * 32 + c * 16 + qg * 4
def NM(qg): return 192 + 4 * qg
KAD, VAD = 208, 212
TMP = 220
GG, SS = 224, 232
CT = 240
WAD, GSA, L16, WDV, KVV = 244, 248, 249, 250, 251
def OT(db, qg): return (db * 4 + qg) * 4
KF, VF = 128, 160
def ONES(qg): return 192 + 4 * qg
LACC = 208
STASH = 212
MPREV = 224
SK, SV, SWQ, SWS = 4, 8, 12, 16
sHEAD, sQB, sWAVE, sKO, sVO, sMA, sMB, sCNT, sNEGD, sRETRY = 20, 21, 22, 23, 24, 25, 26, 27, 28, 29
sX = 30; sT = 34; sHB, sWB, sM = 35, 36, 37
LDS_GS = 0x20000
LDS_FLAG = LDS_GS + 5120
DOFF = 32.0
LMAX = 2.0 ** 60

def kv_dma(srd, n, soff): return f"buffer_load_dwordx4 v{KVV + (n & 1)}, s[{srd}:{srd+3}], s{soff} offen offset:{1024*n} lds"
def k_read(dst, kb, ks, imm): return f"ds_read_b128 {a(dst + (kb*4+ks)*4, 4)}, v{KAD+ks} offset:{imm + kb*4096}"

def qk_mfmas(buf, src, first_c):
    out = []
    for kb in range(2):
        for qg in range(4):
            for ks in range(4):
                d = v(ST(buf, kb, qg), 4)
                c = d if ks else first_c(qg)
                out.append(f"{MF} {d}, {a(src + (kb*4+ks)*4, 4)}, {v(QF(qg, ks), 4)}, {c}")
    return out

def att_step(A, tpar, h, qk=True, sm=True, pv=True, kread=True, dma=True, zero_c=False, toggle=False,
             endwait=None, barrier=False, extra_scal=None, tail_branch=None):
    slot = tpar * 0x8000
    mf = []
    if qk: mf += qk_mfmas(h ^ 1, KF, lambda qg: v(NM(qg), 4))
    nq = len(mf)
    if pv:
        for dd in range(4):
            for qg in range(4):
                for c in range(2):
                    d = a(OT(4*h + dd, qg), 4)
                    cc = "0" if (zero_c and c == 0) else d
                    mf.append(f"{MF} {d}, {a(VF + (dd*2+c)*4, 4)}, {v(PF(tpar ^ 1, c, qg), 4)}, {cc}")
        for qg in range(4):
            cc = "0" if (zero_c and h == 0 and qg == 0) else a(LACC, 4)
            mf.append(f"{MF} {a(LACC, 4)}, {a(ONES(qg), 4)}, {v(PF(tpar ^ 1, h, qg), 4)}, {cc}")
    n = len(mf)
    vr = []
    if pv:
        for dd in range(4):
            for c in range(2):
                for tt in range(2):
                    vr.append(f"ds_read_b64_tr_b16 {a(VF + (dd*2+c)*4 + 2*tt, 2)}, v{VAD + 4*h + dd} offset:{slot + 0x4000 + c*8192 + tt*4096}")
    kr = [k_read(KF, kb, ks, slot + h*8192) for kb in range(2) for ks in range(4)] if kread else []
    dm = []
    if dma:
        dm = [kv_dma(SK if h == 0 else SV, j, sKO if h == 0 else sVO) for j in range(4)]
        tgt = (sMB, 0x8000) if tpar == 0 else (sMA, 0)
        m0set = f"s_add_u32 m0, s{tgt[0]}, {tgt[1] + h*0x4000}"
        adv = f"s_add_u32 s{sKO if h == 0 else sVO}, s{sKO if h == 0 else sVO}, 0x4000"
    ex, cv = [], []
    if sm:
        for qg in range(4):
            for kb in range(2):
                for r in range(4):
                    x = ST(h, kb, qg) + r
                    ex.append(f"v_exp_f32 v{x}, v{x}")
                for p in range(2):
                    x = ST(h, kb, qg) + 2*p
                    cv.append(f"v_cvt_pk_bf16_f32 v{PF(tpar, h, qg) + kb*2 + p}, v{x}, v{x+1}")
    tg = [f"v_xor_b32 v{VAD+j}, 0x10000, v{VAD+j}" for j in range(8)] + [f"v_xor_b32 v{KAD+j}, 0x10000, v{KAD+j}" for j in range(4)] if toggle else []
    pre = []
    if qk and pv:
        gaps = [[] for _ in range(68)]
        S = {g: [] for g in range(68)}; Mm = {g: [] for g in range(68)}; Vv = {g: [] for g in range(68)}
        it = iter(vr)
        for g, cnt in zip(range(1, 20, 2), [2, 2, 1, 2, 1, 2, 1, 2, 1, 2]):
            for _ in range(cnt): Mm[g].append(next(it))
        it = iter(kr)
        if kr:
            for g, cnt in zip(range(33, 44, 2), [1, 2, 1, 2, 1, 1]):
                for _ in range(cnt): Mm[g].append(next(it))
        if dm:
            S[21].append(m0set)
            for g, x in zip((23, 27, 47, 51), dm): Mm[g].append(x)
            S[53].append(adv)
        S[31].append("s_waitcnt lgkmcnt(0)")
        for i, x in enumerate(ex): Vv[2*i].append(x)
        for i, x in enumerate(cv): Vv[4*i + 5].append(x)
        for g, x in zip((31, 31, 45, 49, 53, 55, 55, 57, 59, 59, 63, 63), tg): Vv[g].append(x)
        for g, x in (extra_scal or {}).items(): S[g].append(x)
        S[66].append(endwait)
        if barrier: S[67].append("s_barrier")
        gaps = [S[g] + Mm[g] + Vv[g] for g in range(68)]
        emit_gaps(A, mf, gaps)
    else:
        valu = []
        for i in range(len(ex)):
            valu.append((ex[i], 2))
            if i >= 3 and i % 2 == 1: valu.append((cv[(i - 3) // 2], 1))
        if sm: valu.append(("s_nop 0", 1)); valu.append((cv[-1], 1))
        scal, mem = {}, {}
        if qk:
            if dm:
                scal[1] = [m0set]
                for g, x in zip((3, 9, 15, 21), dm): mem[g] = [x]
                scal[23] = [adv]
            gaps, left = fill(n, scal, mem, valu[:36])
            emit_gaps(A, mf, gaps)
            A.extend(kr); A.extend(left); A.extend([x[0] for x in valu[36:]])
        else:
            A.extend(vr)
            k0 = 8 if sm else 0
            A.extend([x[0] for x in valu[:k0]])
            A("s_waitcnt lgkmcnt(0)")
            gaps, left = fill(n, scal, mem, valu[k0:])
            emit_gaps(A, mf, gaps)
            A.extend(left)
        A.extend(tg)
        for g, x in (extra_scal or {}).items(): A(x)
        if endwait: A(endwait)
        if barrier: A("s_barrier")
    if tail_branch: A(tail_branch)

def gen_k1(stamps=False, dbg=None):
    A = Asm(); vm = VM()
    def st(i): stamp(A, i, stamps, SWS, None, 60, None)
    A("s_cmp_ge_u32 s2, 256")
    A("s_cbranch_scc1 K1_end")
    st(0)
    A(f"s_load_dwordx4 s[40:43], s[0:1], {KA['k']}")
    A(f"s_load_dwordx2 s[44:45], s[0:1], {KA['wq']}")
    A(f"s_load_dwordx2 s[46:47], s[0:1], {KA['ws']}")
    npf = code_prefetch(A, None, 40960, 253, 254, 38)
    for _ in range(npf): vm.issue("pf")
    A("v_lshrrev_b32 v1, 6, v0")
    A("v_and_b32 v2, 63, v0")
    A(f"v_readfirstlane_b32 s{sWAVE}, v1")
    A("s_and_b32 s3, s2, 7")
    A("s_lshl_b32 s3, s3, 2")
    A("s_bfe_u32 s34, s2, 0x20003")
    A(f"s_add_u32 s{sHEAD}, s3, s34")
    A(f"s_lshr_b32 s{sQB}, s2, 5")
    A(f"s_lshl_b32 s{sM}, s{sWAVE}, 12")
    A(f"s_lshl_b32 s{sHB}, s{sHEAD}, 19")
    A(f"s_lshl_b32 s{sWB}, s{sHEAD}, 8")
    A(f"s_lshl_b32 s3, s{sWAVE}, 18")
    A(f"s_add_u32 s{sWB}, s{sWB}, s3")
    A(f"s_lshl_b32 s3, s{sQB}, 2")
    A(f"s_add_u32 s3, s3, s{sWAVE}")
    A(f"s_mul_i32 s{sX}, s3, {4*20480}")
    for q in range(1, 4): A(f"s_add_u32 s{sX+q}, s{sX}, {q*20480}")
    A(f"v_lshlrev_b32 v{L16}, 4, v2")
    A("v_lshrrev_b32 v3, 4, v2")
    A("v_and_b32 v4, 15, v2")
    A("v_lshlrev_b32 v5, 2, v3")
    A("v_xor_b32 v5, v5, v4")
    A("v_lshlrev_b32 v5, 4, v5")
    A(f"v_lshl_add_u32 v{WDV}, v3, 13, v5")
    A("s_waitcnt lgkmcnt(0)")
    srd(A, SWS, 46, WS_END)
    srd(A, SWQ, 44, 640 * 4096 * 2)
    def w_dma(j, n):
        pos = j & 3
        sc_ = []
        if n % 4 == 0: sc_.append(f"s_add_u32 m0, s38, {pos*0x8000 + (n >> 2)*4096}")
        sc_.append(f"s_add_u32 s{sT}, s{sWB}, {j*1048576 + n*32768 - (n & 3)*1024}")
        return sc_, f"buffer_load_dwordx4 v{WDV}, s[{SWQ}:{SWQ+3}], s{sT} offen offset:{(n & 3)*1024} lds"
    def x_load(kk, qg): return f"buffer_load_dwordx4 {v(RING(kk, qg), 4)}, v{L16}, s[{SWS}:{SWS+3}], s{sX+qg} offen offset:{(kk & 3)*1024}"
    A(f"s_lshl_b32 s38, s{sM}, 1")
    A(f"s_lshr_b32 s39, s{sM}, 2")
    A(f"s_add_u32 m0, s39, {LDS_GS}")
    A(f"s_add_u32 s{sT}, s39, {WS_GS1}")
    A(f"buffer_load_dwordx4 v{L16}, s[{SWS}:{SWS+3}], s{sT} offen lds"); vm.issue("W0")
    A(f"s_mov_b32 m0, {LDS_GS + 4096}")
    A(f"s_mov_b32 s{sT}, {WS_GS1 + 4096}")
    A(f"buffer_load_dwordx4 v{L16}, s[{SWS}:{SWS+3}], s{sT} offen lds"); vm.issue("W0")
    for qg in range(4): A(x_load(0, qg)); vm.issue("X0")
    for n in range(8):
        sc_, d = w_dma(0, n); A.extend(sc_); A(d); vm.issue("W0")
    for kk in range(1, 4):
        for qg in range(4): A(x_load(kk, qg)); vm.issue(f"X{kk}")
    for q in range(4): A(f"s_add_u32 s{sX+q}, s{sX+q}, 4096")
    for n in range(8):
        sc_, d = w_dma(1, n); A.extend(sc_); A(d); vm.issue("W1")
    for qg in range(4): A(x_load(4, qg)); vm.issue("X4")
    srd(A, SK, 40, 1 << 24)
    srd(A, SV, 42, 1 << 24)
    A("v_bfe_u32 v6, v2, 2, 2")
    A("v_and_b32 v7, 3, v2")
    A("v_lshl_add_u32 v8, v3, 3, v6")
    A("v_lshlrev_b32 v8, 8, v8")
    A("v_lshl_add_u32 v8, v7, 4, v8")
    for ks in range(4):
        A(f"v_xor_b32 v9, {ks}, v6")
        A(f"v_lshl_add_u32 v{WAD+ks}, v9, 6, v8")
    A(f"v_lshlrev_b32 v{GSA}, 6, v3")
    A(f"v_add_u32 v{GSA}, {LDS_GS}, v{GSA}")
    for j in range(2):
        A(f"v_lshl_add_u32 v9, v3, 1, {8*j}")
        A("v_xor_b32 v9, v9, v4")
        A("v_lshlrev_b32 v9, 4, v9")
        A("v_lshl_add_u32 v9, v3, 8, v9")
        A(f"v_add_u32 v{KVV+j}, s{sM}, v9")
    A("v_and_b32 v10, 7, v4")
    A("v_lshlrev_b32 v10, 1, v10")
    A("v_xor_b32 v10, v10, v3")
    for ks in range(4):
        A(f"v_xor_b32 v9, {4*ks}, v10")
        A("v_lshlrev_b32 v9, 4, v9")
        A("v_lshl_add_u32 v9, v4, 8, v9")
        A(f"v_accvgpr_write_b32 a{STASH+ks}, v9")
    A("v_lshl_add_u32 v10, v3, 2, v6")
    A("v_lshlrev_b32 v11, 8, v10")
    A("v_lshl_add_u32 v11, v7, 3, v11")
    A("v_add_u32 v11, 0x10000, v11")
    A("v_and_b32 v10, 7, v10")
    for db in range(8):
        A(f"v_xor_b32 v9, {db}, v10")
        A("v_lshl_add_u32 v9, v9, 5, v11")
        A(f"v_accvgpr_write_b32 a{STASH+4+db}, v9")
    A("v_mov_b32 v10, 0x3f803f80")
    for qg in range(4):
        A(f"v_cmp_eq_u32 vcc, {qg}, v7")
        A("s_nop 1")
        A("v_cndmask_b32 v9, 0, v10, vcc")
        for r in range(4): A(f"v_accvgpr_write_b32 a{ONES(qg)+r}, v9")
    A("v_mov_b32 v9, 0xff800000")
    for qg in range(4): A(f"v_accvgpr_write_b32 a{MPREV+qg}, v9")
    A(f"s_mov_b32 s{sNEGD}, {fbits(-DOFF)}")
    A(f"s_mov_b32 s{sRETRY}, 0")
    A(f"s_mov_b32 s{sKO}, s{sHB}")
    A(f"s_mov_b32 s{sVO}, s{sHB}")
    def wbuf(kk): return VF if kk % 2 == 0 else KF
    def w_reads(kk):
        pos = (kk >> 2) & 3
        return [f"ds_read_b64_tr_b16 {a(wbuf(kk) + db*4 + 2*tt, 2)}, v{WAD + (db >> 1)} offset:{(pos & 1)*0x8000 + (kk & 3)*8192 + tt*1024 + 8*(db & 1)}"
                for db in range(8) for tt in range(2)]
    def gs_reads(kk, hi): return [f"ds_read_b128 {v(GG + 4*hi, 4)}, v{GSA} offset:{kk*256 + 16*hi}",
                                  f"ds_read_b128 {v(SS + 4*hi, 4)}, v{GSA} offset:{kk*256 + 32 + 16*hi}"]
    def conv(kk, hi):
        out = []; pend = None; i = 0
        for r in (2*hi, 2*hi + 1):
            for qg in range(4):
                x = RING(kk, qg) + r; t = CT + 2*(i & 1); i += 1
                out.append(f"v_fma_mix_f32 v{t}, v{x}, v{GG+2*r}, v{SS+2*r} op_sel_hi:[1,0,0]")
                if pend: out.append(pend)
                out.append(f"v_fma_mix_f32 v{t+1}, v{x}, v{GG+2*r+1}, v{SS+2*r+1} op_sel:[1,0,0] op_sel_hi:[1,0,0]")
                pend = f"v_cvt_pk_bf16_f32 v{x}, v{t}, v{t+1}"
        out.append(pend)
        return out
    A(f"s_waitcnt vmcnt({vm.need('W0', 'X0')})")
    A("s_barrier")
    st(1)
    A.extend(gs_reads(0, 0)); A.extend(gs_reads(0, 1)); A.extend(w_reads(0)[:8])
    A("s_waitcnt lgkmcnt(8)")
    A.extend(w_reads(0)[8:])
    A.extend(conv(0, 0))
    A.extend(gs_reads(1, 0))
    A.extend(conv(0, 1))
    A("s_waitcnt lgkmcnt(0)")
    dl = []
    for j, k0 in ((2, 0), (3, 3), (4, 7)):
        for n in range(8):
            sc_, d = w_dma(j, n); dl.append((k0, sc_, d, f"W{j}"))
    def kvgrp(k0, pos, isv, tag):
        for n in range(4):
            sc_ = [f"s_add_u32 m0, s{sM}, {pos*0x8000 + isv*0x4000}"] if n == 0 else []
            dl.append((k0, sc_, kv_dma(SV if isv else SK, n, sVO if isv else sKO), tag))
        so = sVO if isv else sKO
        dl.append((k0, [f"s_add_u32 s{so}, s{so}, 0x4000"], None, None))
    kvgrp(11, 1, 0, "A-1"); kvgrp(13, 2, 0, "A0"); kvgrp(15, 3, 0, "A1"); kvgrp(17, 3, 1, "A1")
    quota = {0: 3, 1: 3}
    for kk in range(20):
        mf = [f"{MF} {v(QA(db, qg), 4)}, {a(wbuf(kk) + db*4, 4)}, {v(RING(kk, qg), 4)}, {v(QA(db, qg), 4) if kk else '0'}"
              for db in range(8) for qg in range(4)]
        halves = []
        nd = quota.get(kk, 2)
        mydma = []
        while dl and dl[0][0] <= kk and (nd > 0 or dl[0][2] is None):
            it = dl.pop(0); mydma.append(it)
            if it[2] is not None: nd -= 1
        xl = [(x_load(kk + 5, qg), f"X{kk+5}") for qg in range(4)] if kk + 5 < 20 else []
        last = kk == 19
        if not last:
            w = vm.need(f"X{kk+1}")
            first_scal = [f"s_waitcnt vmcnt({w})"] if w is not None else []
            wr = w_reads(kk + 1)
            tog = [f"v_xor_b32 v{WAD+j}, 0x10000, v{WAD+j}" for j in range(4)] if kk in (6, 14) else []
            gaps = []
            vslots = [3, 8, 13, 19, 24, 28, 30]
            vmem = {}; scal = {}
            seq = []
            xi = list(xl); di = list(mydma)
            while xi or di:
                if xi: seq.append(("x",) + xi.pop(0))
                if xi: seq.append(("x",) + xi.pop(0))
                if di:
                    seq.append(("d",) + di.pop(0))
                    while di and di[0][2] is None: seq.append(("s",) + di.pop(0))
            si = 0; lastg = 0
            if xl and (kk + 5) % 4 == 0:
                for q in range(4): scal.setdefault(min(q, 2), []).append(f"s_add_u32 s{sX+q}, s{sX+q}, 4096")
            for it in seq:
                if it[0] == "x":
                    g = vslots[si]; si += 1; vmem[g] = [it[1]]; vm.issue(it[2]); lastg = g
                elif it[0] == "d" and it[3] is not None:
                    g = vslots[si]; si += 1
                    for i, x in enumerate(it[2]): scal.setdefault(g - len(it[2]) + i, []).append(x)
                    vmem[g] = [it[3]]; vm.issue(it[4]); lastg = g
                else:
                    scal.setdefault(lastg + 1, []).extend(it[2])
            scal.setdefault(0, [])[:0] = first_scal
            for hi in range(2):
                ds = (gs_reads(kk + 1, 1) if hi == 0 else (gs_reads(kk + 2, 0) if kk + 2 < 20 else [])) + wr[8*hi:8*hi + 8]
                mem = {g - 16*hi: x for g, x in vmem.items() if g // 16 == hi}
                sc2 = {g - 16*hi: x for g, x in scal.items() if g // 16 == hi}
                free = [g for g in range(0, 13) if g not in mem]
                for g, x in zip(free, ds): mem[g] = [x]
                assert len(free) >= len(ds)
                valu = [(x, 1) for x in conv(kk + 1, hi)]
                if hi == 1: valu += [(x, 1, 13) for x in tog]
                gp, left = fill(16, sc2, mem, valu)
                gp[15] += left
                if hi == 0: gp[15].append("s_waitcnt lgkmcnt(8)")
                gaps += gp
            endw = "s_waitcnt lgkmcnt(0)"
            bar = kk % 4 == 2
            if bar:
                w = vm.need(f"W{kk//4 + 1}" if kk < 18 else "A-1")
                if w is not None: endw = f"s_waitcnt vmcnt({w}) lgkmcnt(0)"
            gaps[31].append(endw)
            if bar: gaps[31].append("s_barrier")
            else: gaps[31].append("s_nop 0")
            if kk == 18:
                gaps[31][:0] = []
            emit_gaps(A, mf, gaps)
        else:
            assert not mydma and not dl
            for j in range(4): A(f"v_accvgpr_read_b32 v{KAD+j}, a{STASH+j}")
            mem = {g: [k_read(VF, g >> 2, g & 3, 0x8000)] for g in range(8)}
            valu = [(f"v_accvgpr_read_b32 v{VAD+j}, a{STASH+4+j}", 1) for j in range(8)]
            for ks in range(4):
                for qg in range(4):
                    b = QF(qg, ks)
                    for p in range(4): valu.append((f"v_cvt_pk_bf16_f32 v{b+p}, v{b+2*p}, v{b+2*p+1}", 1, 8*ks + 4 + qg + 4))
            inl = [x for x in valu if len(x) < 3 or x[2] < 32][:50]
            rest = valu[len(inl):]
            gaps, left = fill(32, {}, mem, inl)
            emit_gaps(A, mf, gaps)
            A.extend(left); A.extend([x[0] for x in rest])
    st(2)
    if dbg == "q":
        A(f"s_lshl_b32 s3, s2, 2"); A(f"s_add_u32 s3, s3, s{sWAVE}"); A("s_lshl_b32 s3, s3, 14")
        A(f"s_add_u32 s3, s3, {WS_O}")
        for b in range(16):
            A(f"buffer_store_dwordx4 {v(8*b, 4)}, v{L16}, s[{SWS}:{SWS+3}], s3 offen")
            A("s_add_u32 s3, s3, 1024")
        A("s_endpgm")
    A.label("K1_att0")
    A.extend([k_read(KF, kb, ks, 0x8000 + 8192) for kb in range(2) for ks in range(4)])
    A(f"s_add_u32 s{sMA}, s{sM}, 0x10000")
    A(f"s_mov_b32 s{sMB}, s{sM}")
    A("s_waitcnt lgkmcnt(8)")
    mf = qk_mfmas(0, VF, lambda qg: "0")
    scal = {1: [f"s_mov_b32 m0, s{sM}"], 14: [f"s_add_u32 s{sKO}, s{sKO}, 0x4000"], 15: [f"s_add_u32 m0, s{sM}, 0x4000"], 30: [f"s_add_u32 s{sVO}, s{sVO}, 0x4000"]}
    mem = {}
    for n in range(4):
        mem[3 + 3*n] = [kv_dma(SK, n, sKO)]; mem[17 + 3*n] = [kv_dma(SV, n, sVO)]
    for n in range(8): vm.issue("A2")
    valu = [(f"v_accvgpr_read_b32 v{TMP+qg}, a{MPREV+qg}", 1) for qg in range(4)]
    valu += [(f"v_xor_b32 v{KAD+j}, 0x10000, v{KAD+j}", 1) for j in range(4)]
    for qg in range(4):
        x = ST(0, 0, qg)
        valu.append((f"v_max3_f32 v{TMP+qg}, v{TMP+qg}, v{x}, v{x+1}", 1, 4*qg + 12))
        valu.append((f"v_max3_f32 v{TMP+qg}, v{TMP+qg}, v{x+2}, v{x+3}", 1, 4*qg + 12))
    gaps, left = fill(32, scal, mem, valu)
    emit_gaps(A, mf, gaps); A.extend(left)
    A("s_nop 1")
    for qg in range(4):
        x = ST(0, 1, qg)
        if qg == 3: A("s_nop 1")
        A(f"v_max3_f32 v{TMP+qg}, v{TMP+qg}, v{x}, v{x+1}")
        A(f"v_max3_f32 v{TMP+qg}, v{TMP+qg}, v{x+2}, v{x+3}")
    for swp in ("v_permlane32_swap_b32", "v_permlane16_swap_b32"):
        for qg in range(4): A(f"v_mov_b32 v{CT+qg}, v{TMP+qg}")
        for qg in range(4): A(f"{swp} v{CT+qg}, v{TMP+qg}")
        for qg in range(4): A(f"v_max_f32 v{TMP+qg}, v{TMP+qg}, v{CT+qg}")
    for qg in range(4):
        for r in range(4): A(f"v_sub_f32 v{NM(qg)+r}, s{sNEGD}, v{TMP+qg}")
    for qg in range(4):
        for kb in range(2):
            for r in range(4): A(f"v_add_f32 v{ST(0,kb,qg)+r}, v{ST(0,kb,qg)+r}, v{NM(qg)}")
    A(f"s_waitcnt vmcnt({vm.need('A0')}) lgkmcnt(0)")
    A("s_barrier")
    st(3)
    W16 = "s_waitcnt vmcnt(16) lgkmcnt(0)"; W0 = "s_waitcnt lgkmcnt(0)"
    swap = {60: f"s_xor_b32 s{sMA}, s{sMA}, 0x10000", 61: f"s_xor_b32 s{sMB}, s{sMB}, 0x10000"}
    att_step(A, 0, 0, pv=False, endwait=W0)
    att_step(A, 0, 1, pv=False, endwait=W16, barrier=True)
    att_step(A, 1, 0, zero_c=True, endwait=W0)
    att_step(A, 1, 1, zero_c=True, endwait=W16, barrier=True, toggle=True, extra_scal={**swap, 62: f"s_mov_b32 s{sCNT}, 14"})
    A(".p2align 6") if False else None
    A.label("K1_loop")
    att_step(A, 0, 0, endwait=W0)
    att_step(A, 0, 1, endwait=W16, barrier=True)
    att_step(A, 1, 0, endwait=W0)
    att_step(A, 1, 1, endwait=W16, barrier=True, toggle=True,
             extra_scal={**swap, 62: f"s_sub_u32 s{sCNT}, s{sCNT}, 1", 63: f"s_cmp_lg_u32 s{sCNT}, 0"}, tail_branch="s_cbranch_scc1 K1_loop")
    att_step(A, 0, 0, dma=False, endwait=W0)
    att_step(A, 0, 1, dma=False, endwait="s_waitcnt vmcnt(8) lgkmcnt(0)", barrier=True)
    att_step(A, 1, 0, dma=False, kread=False, endwait=W0)
    att_step(A, 1, 1, dma=False, kread=False, qk=False, endwait="s_waitcnt vmcnt(0) lgkmcnt(0)", barrier=True, toggle=True)
    att_step(A, 0, 0, dma=False, kread=False, qk=False, sm=False)
    att_step(A, 0, 1, dma=False, kread=False, qk=False, sm=False)
    st(4)
    A("s_nop 7")
    for qg in range(4): A(f"v_accvgpr_read_b32 v{TMP+qg}, a{LACC+qg}")
    A(f"s_mov_b32 s3, {fbits(LMAX)}")
    A("s_mov_b64 s[40:41], 0")
    for qg in range(4):
        A(f"v_cmp_nge_f32 vcc, s3, v{TMP+qg}")
        A("s_or_b64 s[40:41], s[40:41], vcc")
    A("s_cmp_lg_u64 s[40:41], 0")
    A("s_cselect_b32 s3, 1, 0")
    A(f"s_lshl_b32 s40, s{sWAVE}, 2")
    A(f"s_add_u32 s40, s40, {LDS_FLAG}")
    A(f"v_mov_b32 v{CT}, s3")
    A(f"v_mov_b32 v{CT+1}, s40")
    A(f"ds_write_b32 v{CT+1}, v{CT}")
    A(f"v_mov_b32 v{CT+1}, {LDS_FLAG}")
    for qg in range(4): A(f"v_rcp_f32 v{TMP+qg}, v{TMP+qg}")
    A("s_waitcnt lgkmcnt(0)")
    A("s_barrier")
    A(f"ds_read_b128 {v(GG, 4)}, v{CT+1}")
    A(f"s_lshl_b32 s3, s{sQB}, 2")
    A(f"s_add_u32 s3, s3, s{sWAVE}")
    A("s_lshl_b32 s3, s3, 19")
    A(f"s_lshl_b32 s40, s{sHEAD}, 12")
    A("s_add_u32 s3, s3, s40")
    for qg in range(4): A(f"s_add_u32 s{sX+qg}, s3, {WS_O + qg*131072}")
    A("s_waitcnt lgkmcnt(0)")
    A(f"v_or3_b32 v{GG}, v{GG}, v{GG+1}, v{GG+2}")
    A(f"v_or_b32 v{GG}, v{GG}, v{GG+3}")
    A("s_nop 0")
    A(f"v_readfirstlane_b32 s3, v{GG}")
    A("s_nop 0")
    A(f"s_andn2_b32 s3, s3, s{sRETRY}")
    A("s_cbranch_scc1 K1_retry")
    i = 0
    for j in range(4):
        for qg in range(4):
            t = 128 + 16 * (i % 4); i += 1
            for e in range(2):
                for r in range(4): A(f"v_accvgpr_read_b32 v{t+4*e+r}, a{OT(2*j+e, qg)+r}")
            for x in range(8): A(f"v_mul_f32 v{t+x}, v{t+x}, v{TMP+qg}")
            for p in range(4): A(f"v_cvt_pk_bf16_f32 v{t+8+p}, v{t+2*p}, v{t+2*p+1}")
            A(f"buffer_store_dwordx4 {v(t+8, 4)}, v{L16}, s[{SWS}:{SWS+3}], s{sX+qg} offen offset:{1024*j}")
    if stamps:
        st(5)
        A("s_waitcnt vmcnt(0)")
        st(6)
        stamp_out(A, 1, 7, SWS, sWAVE)
    A.label("K1_end")
    A("s_endpgm")
    A.label("K1_retry")
    for j in range(12): A(f"v_accvgpr_read_b32 v{KAD+j}, a{STASH+j}")
    for qg in range(4): A(f"v_mov_b32 v{TMP+qg}, 0xff800000")
    A(f"s_mov_b32 s{sKO}, s{sHB}")
    A(f"s_mov_b32 s{sCNT}, 32")
    A(f"s_mov_b32 m0, s{sM}")
    A.label("K1_maxloop")
    A("s_barrier")
    for n in range(4): A(kv_dma(SK, n, sKO))
    A(f"s_add_u32 s{sKO}, s{sKO}, 0x4000")
    A("s_waitcnt vmcnt(0)")
    A("s_barrier")
    for h in range(2):
        A.extend([k_read(KF, kb, ks, h*8192) for kb in range(2) for ks in range(4)])
        A("s_waitcnt lgkmcnt(0)")
        A.extend(qk_mfmas(0, KF, lambda qg: "0"))
        A("s_nop 7")
        for qg in range(4):
            for kb in range(2):
                x = ST(0, kb, qg)
                A(f"v_max3_f32 v{TMP+qg}, v{TMP+qg}, v{x}, v{x+1}")
                A(f"v_max3_f32 v{TMP+qg}, v{TMP+qg}, v{x+2}, v{x+3}")
    A(f"s_sub_u32 s{sCNT}, s{sCNT}, 1")
    A(f"s_cmp_lg_u32 s{sCNT}, 0")
    A("s_cbranch_scc1 K1_maxloop")
    for qg in range(4): A(f"v_accvgpr_write_b32 a{MPREV+qg}, v{TMP+qg}")
    A(f"s_mov_b32 s{sKO}, s{sHB}")
    A(f"s_mov_b32 s{sVO}, s{sHB}")
    for pos, isv in ((1, 0), (2, 0), (3, 0), (3, 1)):
        A(f"s_add_u32 m0, s{sM}, {pos*0x8000 + isv*0x4000}")
        A("s_nop 0")
        for n in range(4): A(kv_dma(SV if isv else SK, n, sVO if isv else sKO))
        so = sVO if isv else sKO
        A(f"s_add_u32 s{so}, s{so}, 0x4000")
    A(f"s_mov_b32 s{sNEGD}, 0")
    A(f"s_mov_b32 s{sRETRY}, 1")
    A("s_waitcnt vmcnt(0)")
    A("s_barrier")
    A.extend([k_read(VF, kb, ks, 0x8000) for kb in range(2) for ks in range(4)])
    A("s_branch K1_att0")
    return dict(name="attn_kernel", lines=A.lines, vgpr=512, accum=256, sgpr=96, grid=256, block=256, lds=LDS_FLAG + 64)
```

```python
from common import *
MF = "v_mfma_f32_16x16x32_bf16"
def ACC(tg, cb): return (tg * 5 + cb) * 4
def BR(i, tg): return (i % 8) * 16 + tg * 4
def AB(i, cb): return 128 + (i & 1) * 20 + cb * 4
DV, BV, RA, L16 = 80, 85, 89, 90
XV, MV, RED = 91, 92, 93
UTA = 96
EX, EG, EH = 100, 120, 140
RB = 160
SW, SWS, SX, SU = 4, 8, 12, 16
sWAVE, sTB, sCT, sWO, sBO, sL, sT = 20, 21, 22, 23, 24, 25, 26
D = 7

def gen_k24(which, stamps=False):
    o = which == "o"
    NKK = 128 if o else 54
    NI = 32 if o else 14
    WSB = WS_O if o else WS_H2
    name = "oproj_kernel" if o else "down_kernel"
    P = "K2" if o else "K4"
    A = Asm(); vm = VM()
    def st(i): stamp(A, i, stamps, SWS, None, 60, None)
    A("s_cmp_ge_u32 s2, 256")
    A(f"s_cbranch_scc1 {P}_end")
    st(0)
    A(f"s_load_dwordx2 s[40:41], s[0:1], {KA['wo' if o else 'wd']}")
    A(f"s_load_dwordx2 s[42:43], s[0:1], {KA['ws']}")
    A(f"s_load_dwordx2 s[44:45], s[0:1], {KA['x' if o else 'out']}")
    if o: A(f"s_load_dwordx4 s[48:51], s[0:1], {KA['wg']}")
    npf = code_prefetch(A, None, 16384, 253, 254, 38)
    for _ in range(npf): vm.issue("pf")
    A("v_lshrrev_b32 v1, 6, v0")
    A("v_and_b32 v2, 63, v0")
    A(f"v_readfirstlane_b32 s{sWAVE}, v1")
    A("s_and_b32 s3, s2, 7")
    A("s_lshl_b32 s3, s3, 2")
    A("s_bfe_u32 s27, s2, 0x20003")
    A("s_add_u32 s3, s3, s27")
    A(f"s_lshl_b32 s{sTB}, s3, 2")
    A(f"s_lshr_b32 s{sCT}, s2, 5")
    A(f"s_mul_i32 s{sWO}, s{sWAVE}, 40960")
    A(f"s_mov_b32 s{sL}, s{sWO}")
    A(f"s_mul_i32 s3, s{sCT}, 160")
    A(f"s_add_u32 s{sWO}, s{sWO}, s3")
    A(f"s_mul_i32 s{sBO}, s{sTB}, {NKK*1024}")
    A(f"s_lshl_b32 s3, s{sWAVE}, 10")
    A(f"s_add_u32 s{sBO}, s{sBO}, s3")
    A(f"s_add_u32 s{sBO}, s{sBO}, {WSB}")
    A(f"v_lshlrev_b32 v{L16}, 4, v2")
    for tg in range(4): A(f"v_add_u32 v{BV+tg}, {tg*NKK*1024}, v{L16}")
    for j in range(5):
        A(f"v_add_u32 v3, {64*j}, v2")
        A("v_mul_u32_u24 v4, 6554, v3")
        A("v_lshrrev_b32 v4, 16, v4")
        A("v_mul_u32_u24 v5, 1120, v4")
        A("v_lshl_add_u32 v5, v3, 4, v5")
        A(f"v_subrev_u32 v{DV+j}, {1024*(j & 3)}, v5")
    A("s_waitcnt lgkmcnt(0)")
    srd(A, SW, 40, NKK * 32 * 1280)
    srd(A, SWS, 42, WS_END)
    def loads(i):
        slot = (i % 8) * 5120
        out = []
        for j in range(5):
            sc_ = []
            if j == 0: sc_ = [f"s_add_u32 s{sT}, s{sWO}, {i*163840}", f"s_add_u32 m0, s{sL}, {slot}"]
            if j == 4: sc_ = [f"s_add_u32 m0, s{sL}, {slot + 4096}"]
            out.append((sc_, f"buffer_load_dwordx4 v{DV+j}, s[{SW}:{SW+3}], s{sT} offen offset:{1024*(j & 3)} lds"))
        bl = []
        for tg in range(4):
            sc_ = []
            if tg == 0:
                sc_ = [f"s_add_u32 s{sT+1}, s{sBO}, {i*4096}"]
                if not o and i == NI - 1:
                    sc_ += [f"s_cmp_lt_u32 s{sWAVE}, 2", f"s_cselect_b32 s{sT+1}, s{sT+1}, 0x7f000000"]
            bl.append((sc_, f"buffer_load_dwordx4 {a(BR(i, tg), 4)}, v{BV+tg}, s[{SWS}:{SWS+3}], s{sT+1} offen"))
        return [out[0], bl[0], out[1], bl[1], out[2], bl[2], out[3], bl[3], out[4]]
    for i in range(D):
        for sc_, m in loads(i):
            A.extend(sc_)
            if sc_ and "m0" in sc_[-1]: A("s_nop 0")
            A(m); vm.issue(i)
    A("v_lshrrev_b32 v3, 2, v2")
    A("v_and_b32 v4, 3, v2")
    A(f"v_mul_u32_u24 v{RA}, 160, v3")
    A(f"v_lshl_add_u32 v{RA}, v4, 3, v{RA}")
    A(f"v_add_u32 v{RA}, s{sL}, v{RA}")
    A("v_lshrrev_b32 v3, 4, v2")
    A("v_and_b32 v4, 15, v2")
    A(f"v_mul_u32_u24 v{XV}, 1280, v4")
    A(f"v_lshl_add_u32 v{XV}, v3, 3, v{XV}")
    A(f"v_lshlrev_b32 v{MV}, 4, v3")
    A(f"v_add_u32 v{RED}, s{sL}, v{L16}")
    srd(A, SX, 44, 2048 * 640 * 2)
    A(f"s_add_u32 s28, s{sTB}, s{sWAVE}")
    A("s_mul_i32 s29, s28, 20480")
    A(f"s_mul_i32 s3, s{sCT}, 160")
    A("s_add_u32 s29, s29, s3")
    A(f"s_mul_i32 s30, s{sCT}, 320")
    A("s_mul_i32 s31, s28, 40960")
    A(f"s_mul_i32 s3, s{sCT}, 5120")
    A("s_add_u32 s31, s31, s3")
    A(f"s_add_u32 s31, s31, {WS_X1}")
    A("s_lshl_b32 s32, s28, 10")
    A(f"s_add_u32 s32, s32, {WS_ST}")
    extra = []
    if o:
        A(f"s_add_u32 s33, s30, {WS_MOD + 2*2560}")
        A(f"s_add_u32 s34, s30, {WS_MOD + 4*2560}")
        for cb in range(5):
            extra.append(([], f"buffer_load_dwordx2 {v(EX+2*cb, 2)}, v{XV}, s[{SX}:{SX+3}], s29 offen offset:{32*cb}"))
            extra.append(([], f"buffer_load_dwordx4 {v(EG+4*cb, 4)}, v{MV}, s[{SWS}:{SWS+3}], s33 offen offset:{64*cb}"))
            extra.append(([], f"buffer_load_dwordx4 {v(EH+4*cb, 4)}, v{MV}, s[{SWS}:{SWS+3}], s34 offen offset:{64*cb}"))
        A("s_min_u32 s35, s2, 215")
        A("s_cmp_ge_u32 s35, 108")
        A("s_cselect_b32 s46, s50, s48")
        A("s_cselect_b32 s47, s51, s49")
        A("s_cselect_b32 s3, 108, 0")
        A("s_sub_u32 s3, s35, s3")
        A("s_lshl_b32 s36, s3, 5")
        A(f"s_mul_i32 s3, s{sWAVE}, {160*3456}")
        A("s_add_u32 s36, s36, s3")
        srd(A, SU, 46, 640 * 1728 * 2)
        A("v_lshrrev_b32 v5, 1, v2")
        A("v_mul_u32_u24 v5, 3456, v5")
        A("v_and_b32 v6, 1, v2")
        A("v_lshl_add_u32 v94, v6, 4, v5")
        A("v_mul_u32_u24 v6, 1280, v6")
        A(f"v_add_u32 v95, v6, v{MV}")
        A(f"s_mul_i32 s37, s{sWAVE}, 320")
        A(f"s_add_u32 s37, s37, {WS_G2S2}")
        uslot = (NI % 8) * 5120
        side = []
        for q in range(5):
            side.append(([f"s_add_u32 s{sT}, s36, {q*32*3456}", f"s_add_u32 m0, s{sL}, {uslot + 1024*q}"], f"buffer_load_dwordx4 v94, s[{SU}:{SU+3}], s{sT} offen lds"))
            side.append(([], f"buffer_load_dwordx4 {a(168+4*q, 4)}, v95, s[{SWS}:{SWS+3}], s37 offen offset:{64*q}"))
        A("v_bfe_u32 v5, v2, 2, 2")
        A("v_lshl_add_u32 v5, v3, 3, v5")
        A("v_lshlrev_b32 v5, 5, v5")
        A("v_and_b32 v6, 3, v2")
        A("v_lshl_add_u32 v5, v6, 3, v5")
        A(f"v_add_u32 v252, s{sL}, v5")
        extra = side + extra
    else:
        A(f"s_add_u32 s33, s30, {WS_MOD + 5*2560}")
        extra.append(([], f"buffer_load_dwordx4 {v(EH, 4)}, v{L16}, s[{SWS}:{SWS+3}], s32 offen"))
        A("s_add_u32 s34, s31, 4096")
        for cb in range(5):
            extra.append(([], f"buffer_load_dwordx4 {v(EG+4*cb, 4)}, v{MV}, s[{SWS}:{SWS+3}], s33 offen offset:{64*cb}"))
            extra.append(([], f"buffer_load_dwordx4 {v(EX+4*cb, 4)}, v{L16}, s[{SWS}:{SWS+3}], s{31 if cb < 4 else 34} offen offset:{1024*(cb & 3)}"))
    def reads(i): return [f"ds_read_b64_tr_b16 {a(AB(i, cb) + 2*tt, 2)}, v{RA} offset:{(i % 8)*5120 + tt*2560 + 32*cb}" for cb in range(5) for tt in range(2)]
    A(f"s_waitcnt vmcnt({vm.need(0)})")
    st(1)
    A.extend(reads(0))
    A("s_waitcnt lgkmcnt(0)")
    for i in range(NI):
        mf = [f"{MF} {v(ACC(tg, cb), 4)}, {a(AB(i, cb), 4)}, {a(BR(i, tg), 4)}, {v(ACC(tg, cb), 4) if i else '0'}" for cb in range(5) for tg in range(4)]
        gaps = [[] for _ in range(20)]
        if i + 1 < NI:
            gaps[0].append(f"s_waitcnt vmcnt({vm.need(i+1)})")
            rd = reads(i + 1)
        else: rd = []
        if i + D < NI: ld = loads(i + D); tag = i + D
        else: ld = extra[:9]; extra = extra[9:]; tag = "E"
        for q, (sc_, m) in enumerate(ld):
            g = 2*q + 2
            for z, x in enumerate(sc_): gaps[max(g - len(sc_) + z, g - 2) if len(sc_) <= 2 else g - 1].append(x)
        for q, (sc_, m) in enumerate(ld):
            gaps[2*q + 2].append(m); vm.issue(tag)
        for q in range(len(rd) // 2): gaps[2*q + 1] += rd[2*q:2*q + 2]
        if rd: gaps[19].append("s_waitcnt lgkmcnt(0)")
        emit_gaps(A, mf, gaps)
    assert not extra
    st(2)
    A("s_waitcnt vmcnt(0)")
    if o:
        for q in range(5):
            for tt in range(2): A(f"ds_read_b64_tr_b16 {a(128 + 4*q + 2*tt, 2)}, v252 offset:{uslot + 1024*q + 128*tt}")
        A("s_waitcnt lgkmcnt(0)")
        for q in range(5): A(f"{MF} {v(UTA, 4)}, {a(128+4*q, 4)}, {a(168+4*q, 4)}, {v(UTA, 4) if q else '0'}")
    else:
        A.extend(ln_stats(A, EH, None, EH+4, EH+5, want="r2"))
        A("s_nop 0")
        for x in range(20): A(f"v_mul_f32 v{EG+x}, v{EG+x}, v{EH+5}")
    for t in range(20): A(f"ds_write_b128 v{RED}, {v(4*t, 4)} offset:{1024*t}")
    if o: A(f"ds_write_b128 v{RED}, {v(UTA, 4)} offset:{1024*20}")
    A(f"s_mul_i32 s3, s{sWAVE}, 5120")
    A(f"v_add_u32 v{RED}, s3, v{L16}")
    A(f"v_add_u32 v{RED+1}, 81920, v{RED}")
    A(f"v_add_u32 v{RED+2}, 81920, v{L16}")
    A("s_waitcnt lgkmcnt(0)")
    A("s_barrier")
    for cb in range(5):
        for w in range(4): A(f"ds_read_b128 {v(16*cb + 4*w, 4)}, v{RED + (w >> 1)} offset:{(w & 1)*40960 + 1024*cb}")
    if o:
        for w in range(4): A(f"ds_read_b128 {v(RB + 4*w, 4)}, v{L16 if w < 2 else RED+2} offset:{(w & 1)*40960 + 20480}")
    nout = 4 if o else 0
    Z = lambda cb, r: 16*cb + r
    for cb in range(5):
        A(f"s_waitcnt lgkmcnt({min(15, 4*(4-cb) + nout)})")
        for r in range(4):
            A(f"v_add_f32 v{16*cb+r}, v{16*cb+r}, v{16*cb+4+r}")
            A(f"v_add_f32 v{16*cb+8+r}, v{16*cb+8+r}, v{16*cb+12+r}")
        for r in range(4): A(f"v_add_f32 v{16*cb+r}, v{16*cb+r}, v{16*cb+8+r}")
        if o:
            for r in range(4):
                src = EX + 2*cb + (r >> 1)
                A(f"v_lshlrev_b32 v{16*cb+4+r}, 16, v{src}" if r % 2 == 0 else f"v_and_b32 v{16*cb+4+r}, 0xffff0000, v{src}")
            for r in range(4): A(f"v_fmac_f32 v{16*cb+4+r}, v{EG+4*cb+r}, v{16*cb+r}")
            if cb == 4: A("s_add_u32 s31, s31, 4096")
            A(f"buffer_store_dwordx4 {v(16*cb+4, 4)}, v{L16}, s[{SWS}:{SWS+3}], s31 offen offset:{1024*(cb & 3)}")
            for r in range(4): A(f"v_mul_f32 v{16*cb+8+r}, v{16*cb+4+r}, v{EH+4*cb+r}")
            for p in range(2): A(f"v_cvt_pk_bf16_f32 v{16*cb+12+p}, v{16*cb+8+2*p}, v{16*cb+9+2*p}")
            A(f"s_mul_i32 s3, s{sCT}, 5")
            A(f"s_add_u32 s3, s3, {cb}")
            A("s_and_b32 s27, s3, 1")
            A("s_lshl_b32 s27, s27, 3")
            A("s_lshr_b32 s3, s3, 1")
            A("s_lshl_b32 s3, s3, 10")
            A("s_add_u32 s3, s3, s27")
            A("s_mul_i32 s27, s28, 20480")
            A("s_add_u32 s3, s3, s27")
            A(f"s_add_u32 s3, s3, {WS_Y}")
            A(f"buffer_store_dwordx2 {v(16*cb+12, 2)}, v{L16}, s[{SWS}:{SWS+3}], s3 offen")
            for r in range(4):
                x = 16*cb + 4 + r
                if cb == 0 and r < 2:
                    A(f"v_mov_b32 v{RB+16+2*r}, v{x}"); A(f"v_mul_f32 v{RB+17+2*r}, v{x}, v{x}")
                else:
                    A(f"v_add_f32 v{RB+16+2*(r & 1)}, v{RB+16+2*(r & 1)}, v{x}"); A(f"v_fmac_f32 v{RB+17+2*(r & 1)}, v{x}, v{x}")
        else:
            for r in range(4): A(f"v_fmac_f32 v{EX+4*cb+r}, v{EG+4*cb+r}, v{16*cb+r}")
            for p in range(2): A(f"v_cvt_pk_bf16_f32 v{16*cb+12+p}, v{EX+4*cb+2*p}, v{EX+4*cb+2*p+1}")
            A(f"buffer_store_dwordx2 {v(16*cb+12, 2)}, v{XV}, s[{SX}:{SX+3}], s29 offen offset:{32*cb}")
    if o:
        s0 = RB + 16
        A(f"v_add_f32 v{s0}, v{s0}, v{s0+2}")
        A(f"v_add_f32 v{s0+1}, v{s0+1}, v{s0+3}")
        for swp in ("v_permlane32_swap_b32", "v_permlane16_swap_b32"):
            A(f"v_mov_b32 v{s0+2}, v{s0}"); A(f"v_mov_b32 v{s0+3}, v{s0+1}"); A("s_nop 0")
            A(f"{swp} v{s0+2}, v{s0}"); A(f"{swp} v{s0+3}, v{s0+1}")
            A(f"v_add_f32 v{s0}, v{s0}, v{s0+2}"); A(f"v_add_f32 v{s0+1}, v{s0+1}, v{s0+3}")
        A(f"s_lshr_b32 s3, s{sCT}, 1"); A("s_lshl_b32 s3, s3, 8")
        A(f"s_and_b32 s27, s{sCT}, 1"); A("s_lshl_b32 s27, s27, 3")
        A("s_add_u32 s3, s3, s27"); A("s_add_u32 s3, s3, s32")
        A("s_waitcnt lgkmcnt(0)")
        for r in range(4):
            A(f"v_add_f32 v{RB+r}, v{RB+r}, v{RB+4+r}")
            A(f"v_add_f32 v{RB+8+r}, v{RB+8+r}, v{RB+12+r}")
        for r in range(4): A(f"v_add_f32 v{RB+r}, v{RB+r}, v{RB+8+r}")
        A(f"v_lshrrev_b32 v{RB+4}, 4, v{L16}")
        A(f"v_and_b32 v{RB+4}, 15, v{RB+4}")
        A(f"v_lshl_add_u32 v{RB+4}, v{RB+4}, 6, v{MV}")
        A("s_lshl_b32 s27, s35, 7")
        A(f"s_add_u32 s27, s27, {WS_UT}")
        A("s_mov_b64 exec, 0xffff")
        A(f"buffer_store_dwordx2 {v(s0, 2)}, v{L16}, s[{SWS}:{SWS+3}], s3 offen")
        A("s_mov_b32 exec_lo, 0x00030003")
        A("s_mov_b32 exec_hi, 0x00030003")
        A(f"buffer_store_dwordx4 {v(RB, 4)}, v{RB+4}, s[{SWS}:{SWS+3}], s27 offen")
        A("s_mov_b64 exec, -1")
    if stamps:
        st(3)
        A("s_waitcnt vmcnt(0)")
        st(4)
        stamp_out(A, 2 if o else 4, 5, SWS, sWAVE)
    A.label(f"{P}_end")
    A("s_endpgm")
    return dict(name=name, lines=A.lines, vgpr=512, accum=256, sgpr=96, grid=256, block=256, lds=163840)
```

```python
from common import *
MF = "v_mfma_f32_16x16x32_bf16"
def ACC(cb, tg): return (cb * 4 + tg) * 4
NR = 12
def BR(kk, tg): return (kk % NR) * 16 + tg * 4
def AB(kk, cb): return 192 + (kk & 1) * 32 + cb * 4
UU, TT = 128, 160
STT = 192
MU, SG = 208, 212
WAD, L16, WDV, MV = 216, 220, 221, 222
BV = 224
PK = 232
SG_, SU_, SWS = 4, 8, 12
sWAVE, sFT, sTB, sWB, sBO, sM, sT = 20, 21, 22, 23, 24, 25, 26

def gen_k3(stamps=False):
    A = Asm(); vm = VM()
    def st(i): stamp(A, i, stamps, SWS, None, 60, None)
    A("s_cmp_ge_u32 s2, 216")
    A("s_cbranch_scc1 K3_end")
    st(0)
    A(f"s_load_dwordx4 s[40:43], s[0:1], {KA['wg']}")
    A(f"s_load_dwordx2 s[44:45], s[0:1], {KA['ws']}")
    npf = code_prefetch(A, None, 16384, 253, 254, 38)
    for _ in range(npf): vm.issue("pf")
    A("v_lshrrev_b32 v1, 6, v0")
    A("v_and_b32 v2, 63, v0")
    A(f"v_readfirstlane_b32 s{sWAVE}, v1")
    A("s_bfe_u32 s3, s2, 0x20001")
    A("s_mul_i32 s3, s3, 27")
    A("s_lshr_b32 s27, s2, 3")
    A("s_add_u32 s3, s3, s27")
    A(f"s_lshr_b32 s{sFT}, s3, 2")
    A("s_and_b32 s3, s3, 3")
    A("s_and_b32 s27, s2, 1")
    A("s_lshl_b32 s27, s27, 2")
    A("s_add_u32 s3, s3, s27")
    A("s_lshl_b32 s3, s3, 2")
    A(f"s_add_u32 s3, s3, s{sWAVE}")
    A(f"s_lshl_b32 s{sTB}, s3, 2")
    A(f"s_mul_i32 s{sBO}, s{sTB}, 20480")
    A(f"s_add_u32 s{sBO}, s{sBO}, {WS_Y}")
    A(f"s_mul_i32 s{sWB}, s{sWAVE}, {32*3456}")
    A(f"s_lshl_b32 s3, s{sFT}, 7")
    A(f"s_add_u32 s{sWB}, s{sWB}, s3")
    A(f"s_lshl_b32 s{sM}, s{sWAVE}, 13")
    A(f"v_lshlrev_b32 v{L16}, 4, v2")
    for tg in range(4): A(f"v_add_u32 v{BV+tg}, {tg*20480}, v{L16}")
    A("v_lshrrev_b32 v3, 3, v2")
    A("v_and_b32 v4, 6, v3")
    A("v_and_b32 v5, 7, v2")
    A("v_xor_b32 v4, v4, v5")
    A("v_mul_u32_u24 v3, 3456, v3")
    A(f"v_lshl_add_u32 v{WDV}, v4, 4, v3")
    A("s_waitcnt lgkmcnt(0)")
    srd(A, SG_, 40, 640 * 1728 * 2)
    srd(A, SU_, 42, 640 * 1728 * 2)
    srd(A, SWS, 44, WS_END)
    def w_dma(j, n):
        up, q = n >> 2, n & 3
        sc_ = []
        if q == 0: sc_.append(f"s_add_u32 m0, s{sM}, {j*0x8000 + up*4096}")
        sc_.append(f"s_add_u32 s{sT}, s{sWB}, {j*128*3456 + q*(8*3456 - 1024)}")
        sr = SU_ if up else SG_
        return sc_, f"buffer_load_dwordx4 v{WDV}, s[{sr}:{sr+3}], s{sT} offen offset:{q*1024} lds"
    def b_load(kk, tg):
        sc_ = [f"s_add_u32 s{sT+1}, s{sBO}, {(kk >> 2)*4096}"] if (tg == 0 and kk % 4 == 0) else []
        return sc_, f"buffer_load_dwordx4 {a(BR(kk, tg), 4)}, v{BV+tg}, s[{SWS}:{SWS+3}], s{sT+1} offen offset:{(kk & 3)*1024}"
    def issue(x, tag): A.extend(x[0]); A(x[1]); vm.issue(tag)
    for tg in range(4): issue(b_load(0, tg), "B0")
    for n in range(8): issue(w_dma(0, n), "W0")
    for kk in range(1, 4):
        for tg in range(4): issue(b_load(kk, tg), f"B{kk}")
    for n in range(8): issue(w_dma(1, n), "W1")
    for kk in range(4, 6):
        for tg in range(4): issue(b_load(kk, tg), f"B{kk}")
    A("v_lshrrev_b32 v3, 2, v2")
    A("v_and_b32 v4, 3, v2")
    A("v_lshlrev_b32 v5, 7, v3")
    A("v_lshl_add_u32 v5, v4, 3, v5")
    A("v_bfe_u32 v3, v3, 1, 2")
    for fb in range(4):
        A(f"v_xor_b32 v4, {fb}, v3")
        A(f"v_lshl_add_u32 v{WAD+fb}, v4, 5, v5")
    A("v_lshrrev_b32 v3, 4, v2")
    A(f"v_lshlrev_b32 v{MV}, 4, v3")
    A(f"s_lshl_b32 s28, s{sTB}, 10")
    A(f"s_add_u32 s28, s28, {WS_ST}")
    A(f"s_lshl_b32 s29, s{sFT}, 9")
    A(f"s_add_u32 s29, s29, {WS_UT}")
    A(f"s_add_u32 s30, s29, {108*128}")
    A(f"s_mul_i32 s31, s{sTB}, {54*1024}")
    A(f"s_lshl_b32 s3, s{sFT}, 11")
    A("s_add_u32 s31, s31, s3")
    for tg in range(4): A(f"s_add_u32 s{32+tg}, s31, {WS_H2 + tg*54*1024}")
    q = []
    ex = [([], f"buffer_load_dwordx4 {v(STT+4*tg, 4)}, v{L16}, s[{SWS}:{SWS+3}], s28 offen offset:{1024*tg}") for tg in range(4)]
    for cb in range(8):
        so = 29 if cb < 4 else 30
        ex.append(([], f"buffer_load_dwordx4 {v(UU+4*cb, 4)}, v{MV}, s[{SWS}:{SWS+3}], s{so} offen offset:{128*(cb & 3)}"))
        ex.append(([], f"buffer_load_dwordx4 {v(TT+4*cb, 4)}, v{MV}, s[{SWS}:{SWS+3}], s{so} offen offset:{128*(cb & 3) + 64}"))
    sched = {kk: [] for kk in range(20)}
    for kk in range(14):
        for tg in range(4): sched[kk].append((b_load(kk + 6, tg), f"B{kk+6}"))
    for j, k0 in ((2, 0), (3, 3), (4, 6)):
        for n in range(8): sched[k0 + n // 3].append((w_dma(j, n), f"W{j}"))
    for i, x in enumerate(ex): sched[1 + i // 4].append((x, "E"))
    def w_reads(kk):
        j = kk >> 2
        return [f"ds_read_b64_tr_b16 {a(AB(kk, cb) + 2*tt, 2)}, v{WAD + (cb & 3)} offset:{(j & 1)*0x8000 + (kk & 3)*8192 + (cb >> 2)*4096 + tt*2048}"
                for cb in range(8) for tt in range(2)]
    A(f"s_waitcnt vmcnt({vm.need('W0', 'B0')})")
    A("s_barrier")
    st(1)
    A.extend(w_reads(0))
    A("s_waitcnt lgkmcnt(0)")
    stats = []
    for tg in range(4): stats.append(ln_stats(A, STT + 4*tg, None, MU + tg, SG + tg))
    stats = [x for grp in zip(*stats) for x in grp if not x.startswith("s_nop")]
    order = [0, 4, 1, 5, 2, 6, 3, 7]
    for kk in range(20):
        cbs = order
        mf = [f"{MF} {v(ACC(cb, tg), 4)}, {a(AB(kk, cb), 4)}, {a(BR(kk, tg), 4)}, {v(ACC(cb, tg), 4) if kk else '0'}" for cb in cbs for tg in range(4)]
        scal, mem, valu = {}, {}, []
        if kk == 9:
            scal[0] = [f"s_waitcnt vmcnt({vm.need('E')})"]
        if kk in (9, 10):
            h = len(stats) // 2
            valu = [(x, 2 if "sqrt" in x else 1) for x in (stats[:h] if kk == 9 else stats[h:])]
        if 11 <= kk <= 18:
            pos = kk - 11; cb = cbs[pos]
            ops = []
            for tg in range(4):
                for r in range(4): ops.append(f"v_fmac_f32 v{ACC(cb, tg)+r}, v{MU+tg}, v{UU+4*cb+r}")
                for r in range(4): ops.append(f"v_fmac_f32 v{ACC(cb, tg)+r}, v{SG+tg}, v{TT+4*cb+r}")
            cbs = order[pos:] + order[:pos]
            mf = [f"{MF} {v(ACC(c2, tg), 4)}, {a(AB(kk, c2), 4)}, {a(BR(kk, tg), 4)}, {v(ACC(c2, tg), 4)}" for c2 in cbs for tg in range(4)]
            valu = [(x, 1, 8) for x in ops]
        slots = [2, 5, 8, 11, 14, 17, 20, 23, 26, 28, 30]
        assert len(sched[kk]) <= len(slots)
        for g, ((sc_, m), tag) in zip(slots, sched[kk]):
            for z, x in enumerate(sc_): scal.setdefault(g - len(sc_) + z, []).append(x)
            mem[g] = [m]; vm.issue(tag)
        if kk < 19:
            rd = w_reads(kk + 1)
            free = [g for g in range(0, 27) if g not in mem]
            per = 2 if (11 <= kk <= 18) else 1
            for i, x in enumerate(rd): mem.setdefault(free[i // per], []).append(x)
            if kk in (6, 14): valu += [(f"v_add_u32 v{WAD+j}, 0x10000, v{WAD+j}", 1, 27) for j in range(4)]
            gaps, left = fill(32, scal, mem, valu, start=8 if 11 <= kk <= 18 else 0)
            gaps[31] += left
            tags = [f"B{kk+1}"]
            bar = kk % 4 == 2 and kk < 18
            if bar: tags.append(f"W{kk//4 + 1}")
            w = vm.need(*tags)
            gaps[31].insert(0, f"s_waitcnt vmcnt({w}) lgkmcnt(0)" if w is not None else "s_waitcnt lgkmcnt(0)")
            if bar: gaps[31].insert(1, "s_barrier")
            emit_gaps(A, mf, gaps)
        else:
            ep = []
            for p in range(2):
                for tg in range(4):
                    e0 = 16*p + 12 + tg + 4
                    t = PK + 4*((p*4 + tg) % 4)
                    for e in range(2):
                        fb = 2*p + e
                        for r in range(4): ep.append((f"v_max_f32 v{ACC(fb, tg)+r}, 0, v{ACC(fb, tg)+r}", 1, e0))
                        for r in range(4): ep.append((f"v_mul_f32 v{ACC(fb, tg)+r}, v{ACC(fb, tg)+r}, v{ACC(4+fb, tg)+r}", 1, e0))
                        for z in range(2): ep.append((f"v_cvt_pk_bf16_f32 v{t+2*e+z}, v{ACC(fb, tg)+2*z}, v{ACC(fb, tg)+2*z+1}", 1, e0))
                    ep.append((f"buffer_store_dwordx4 {v(t, 4)}, v{L16}, s[{SWS}:{SWS+3}], s{32+tg} offen offset:{1024*p}", 2, e0))
            gaps, left = fill(32, {}, {}, ep[:30], start=20)
            emit_gaps(A, mf, gaps)
            st(2)
            A.extend(left); A.extend([x[0] for x in ep[30:]])
    if stamps:
        st(3)
        A("s_waitcnt vmcnt(0)")
        st(4)
        stamp_out(A, 3, 5, SWS, sWAVE)
    A.label("K3_end")
    A("s_endpgm")
    return dict(name="gateup_kernel", lines=A.lines, vgpr=512, accum=256, sgpr=96, grid=216, block=256, lds=163840)
```

```python
import sys
from k0 import gen_k0
from k1 import gen_k1
from k24 import gen_k24
from k3 import gen_k3
from common import *
HEADER = open("adaLN_cond__mha_block_cached__glu_gated_reglu__prompt.s.ref").read().split("; Override launch")[0].rstrip("\n").split("\n") if len(sys.argv) > 2 and sys.argv[2] == "final" else ["; dev build"]
def build(stamps=False):
    ks = [gen_k0(stamps), gen_k1(stamps), gen_k24("o", stamps), gen_k3(stamps), gen_k24("d", stamps)]
    ks[-1]["lines"] = ks[-1]["lines"] + ["    .fill 4096, 4, 0xBF800000      ; keeps the code-prefetch loads inside .text"]
    return build_file(HEADER, ks)
if __name__ == "__main__":
    out = sys.argv[1]
    open(out, "w").write(build(stamps=(len(sys.argv) > 2 and sys.argv[2] == "stamps")))
```

```python
from asmlib import *
import math, struct
KA = dict(x=0, k=8, v=16, wq=24, wo=32, bx=40, wg=48, wu=56, wd=64, c=72, wmod=80, out=88, dbg=96, ws=104)
WS_XH  = 0x000000
WS_GS1 = 0x280000
WS_MOD = 0x282000
WS_G2S2 = 0x286000
WS_UT  = 0x288000
WS_ST  = 0x290000
WS_CNT = 0x2C0000
WS_WSH = 0x2400000
CNT_SH, CNT_1, CNT_2, CNT_3 = 0, 8, 16, 24
WS_Y   = 0x1400000
WS_X1  = 0x1700000
WS_H2  = 0x1D00000
WS_O   = 0x400000
WS_END = 0x4000000
WS_STAMP = 0x3000000
QSCALE = math.log2(math.e) / math.sqrt(128.0)
def fbits(x): return "0x%08x" % struct.unpack("<I", struct.pack("<f", x))[0]

class VM:
    def __init__(self): self.q = []
    def issue(self, tag): self.q.append(tag)
    def need(self, *tags):
        last = max((i for i, t in enumerate(self.q) if t in tags), default=None)
        if last is None: return None
        n = len(self.q) - 1 - last
        self.q = self.q[last + 1:]
        return n

def emit_gaps(A, mf, gaps):
    assert len(mf) == len(gaps)
    for m, g in zip(mf, gaps):
        if m: A(m)
        for x in g: A(x)

def code_prefetch(A, start_label, nbytes, vtmp, vdst, sp, nthreads=256):
    A(f"s_getpc_b64 s[{sp}:{sp+1}]")
    A(f"v_lshlrev_b32 v{vtmp}, 6, v0")
    span = nthreads * 64
    n = (nbytes + span - 1) // span
    for j in range(n):
        A(f"global_load_dword {vdst}, v{vtmp}, s[{sp}:{sp+1}]")
        if j + 1 < n: A(f"v_add_u32 v{vtmp}, {span}, v{vtmp}")
    return n

def stamp(A, idx):
    A("s_memrealtime s[60:61]")
    A("s_memtime s[62:63]")
    A("s_waitcnt lgkmcnt(0)")
    A(f"v_writelane_b32 v255, s60, {idx}")
    A(f"v_writelane_b32 v255, s62, {32+idx}")

def fill(n, scal, mem, valu, start=0):
    cost = [sum(2 if x.startswith("buffer") else 1 for x in mem.get(g, [])) for g in range(n)]
    total = sum(c for _, c, *r in valu)
    free = sum(max(0, 2 - cost[g]) for g in range(start, n))
    over = max(0, total - free)
    cap = [2] * n
    cand = [g for g in range(start, n) if cost[g] < 2] or list(range(start, n))
    while over > 0:
        m = min(over, len(cand))
        for i in range(m): cap[cand[(i * len(cand)) // m]] += 1
        over -= m
    gaps = [list(scal.get(g, [])) + list(mem.get(g, [])) for g in range(n)]
    g = start
    left = []
    for it in valu:
        t, c = it[0], it[1]
        e = it[2] if len(it) > 2 else 0
        g = max(g, e)
        while g < n and cost[g] + c > cap[g]: g += 1
        if g >= n: left.append(t); continue
        gaps[g].append(t); cost[g] += c
    return gaps, left

def stamp_out(A, kidx, srd, swave, vl16):
    A("s_lshl_b32 s3, s2, 2"); A(f"s_add_u32 s3, s3, s{swave}"); A("s_lshl_b32 s3, s3, 8"); A(f"s_add_u32 s3, s3, {WS_STAMP + 0x40000*kidx}")
    A(f"v_lshrrev_b32 v1, 2, v{vl16}")
    A(f"buffer_store_dword v255, v1, s[{srd}:{srd+3}], s3 offen")

def ln_stats(A, st, t0, mu, sig, want="sig"):
    o = []
    o.append(f"v_add_f32 v{st}, v{st}, v{st+2}")
    o.append(f"v_add_f32 v{st+1}, v{st+1}, v{st+3}")
    for swp in ("v_permlane32_swap_b32", "v_permlane16_swap_b32"):
        o.append(f"v_mov_b32 v{st+2}, v{st}")
        o.append(f"v_mov_b32 v{st+3}, v{st+1}")
        o.append("s_nop 0")
        o.append(f"{swp} v{st+2}, v{st}")
        o.append(f"{swp} v{st+3}, v{st+1}")
        o.append(f"v_add_f32 v{st}, v{st}, v{st+2}")
        o.append(f"v_add_f32 v{st+1}, v{st+1}, v{st+3}")
    o.append(f"v_mul_f32 v{mu}, {fbits(-1/640)}, v{st}")
    o.append(f"v_mul_f32 v{st+1}, {fbits(1/640)}, v{st+1}")
    o.append(f"v_fma_f32 v{st+1}, -v{mu}, v{mu}, v{st+1}")
    o.append(f"v_max_f32 v{st+1}, 0, v{st+1}")
    o.append(f"v_add_f32 v{st+1}, {fbits(1e-5)}, v{st+1}")
    o.append(f"v_sqrt_f32 v{sig}, v{st+1}" if want == "sig" else f"v_rcp_f32 v{sig}, v{st+1}")
    return o

pX, pK, pV, pWQ, pWO, pWG, pWU, pWD, pOUT, pWS = 44, 46, 48, 50, 52, 56, 58, 40, 42, 96
SWS = 16
sWAVE = 22
SPIN_MAX = 1 << 21

def signal(A, scnt_off, vz, vone, label, younger=0):
    A(f"s_waitcnt vmcnt({younger})")
    A("s_barrier")
    A(f"s_cmp_lg_u32 s{sWAVE}, 0")
    A(f"s_cbranch_scc1 {label}")
    A(f"v_mov_b32 v{vz}, 0")
    A(f"v_mov_b32 v{vone}, 1")
    A("s_mov_b64 exec, 1")
    A(f"buffer_atomic_add v{vone}, v{vz}, s[{SWS}:{SWS+3}], s{scnt_off} offen sc1")
    A("s_mov_b64 exec, -1")
    A.label(label)

def poll(A, scnt_off, voff, vt, target, label):
    A(f"s_mov_b32 s98, {SPIN_MAX}")
    A.label(label)
    A(f"buffer_load_dword v{vt}, v{voff}, s[{SWS}:{SWS+3}], s{scnt_off} offen sc1")
    A("s_sub_u32 s98, s98, 1")
    A(f"s_cbranch_scc1 {label}_done")
    A("s_waitcnt vmcnt(0)")
    A(f"v_cmp_gt_u32 vcc, {target}, v{vt}")
    A(f"s_cbranch_vccnz {label}")
    A.label(label + "_done")

def wait_group(A, scnt_off, vz, vt, target, label, pre=None):
    A(f"s_cmp_lg_u32 s{sWAVE}, 0")
    A(f"s_cbranch_scc1 {label}_done")
    A(f"v_mov_b32 v{vz}, 0")
    poll(A, scnt_off, vz, vt, target, label)
    if pre: A(pre)
    A("s_barrier")
```

```python
from common import *

def pull(A):
    A("s_lshl_b32 s33, s2, 8")
    A("v_add_u32 v90, s33, v0")
    A("s_cmp_ge_u32 s2, 160")
    A("s_cbranch_scc1 %s_kv" % A.tag)
    srd(A, 36, 44, 640 * 4096 * 2)
    A("v_lshlrev_b32 v90, 7, v90")
    A("buffer_load_dword v91, v90, s[36:39], 0 offen")
    A("s_branch %s_pd" % A.tag)
    A.label("%s_kv" % A.tag)
    A("s_cmp_ge_u32 s2, 224")
    A("s_cselect_b32 s34, s42, s40")
    A("s_cselect_b32 s35, s43, s41")
    A("s_cselect_b32 s33, 7, 9")
    A("s_cselect_b32 s32, 224, 160" if False else "s_cselect_b32 s32, 64, 0")
    A("s_add_u32 s32, s32, 160")
    A("s_lshl_b32 s32, s32, 8")
    A("v_subrev_u32 v90, s32, v90")
    A("v_lshrrev_b32 v92, s33, v90")
    A("v_lshlrev_b32 v93, s33, v92")
    A("v_sub_u32 v90, v90, v93")
    A("v_lshlrev_b32 v90, 7, v90")
    A("v_lshl_add_u32 v90, v92, 19, v90")
    srd(A, 36, 34, 1 << 24)
    A("buffer_load_dword v91, v90, s[36:39], 0 offen")
    A.label("%s_pd" % A.tag)

def gen_k0(stamps=False, opt={}):
    A = Asm()
    A("s_cmp_ge_u32 s2, 248")
    A("s_cbranch_scc1 K0_end")
    A(f"s_load_dwordx2 s[4:5], s[0:1], {KA['ws']}")
    A(f"s_load_dwordx4 s[40:43], s[0:1], {KA['k']}")
    A(f"s_load_dwordx2 s[44:45], s[0:1], {KA['wq']}")
    A("s_cmp_ge_u32 s2, 120")
    A("s_cbranch_scc1 K0_ln")
    A(f"s_load_dwordx4 s[8:11], s[0:1], {KA['c']}")
    A("v_lshrrev_b32 v1, 2, v0")
    A("v_and_b32 v2, 3, v0")
    A("v_mul_u32_u24 v3, 20, v1")
    A("s_mov_b32 s3, 76800")
    A("v_mul_lo_u32 v4, s3, v1")
    A("v_lshl_add_u32 v4, v2, 4, v4")
    A("s_lshl_b32 s3, s2, 6")
    A("v_add_u32 v4, s3, v4")
    A("s_waitcnt lgkmcnt(0)")
    srd(A, 12, 8, 1280)
    srd(A, 16, 10, 640 * 3840 * 2)
    srd(A, 20, 4, WS_END)
    A("buffer_load_dwordx4 v[8:11], v3, s[12:15], 0 offen")
    A("buffer_load_dword v12, v3, s[12:15], 0 offen offset:16")
    for j in range(10):
        A(f"s_mov_b32 s24, {7680*j}")
        A(f"buffer_load_dwordx4 v[{32+4*j}:{35+4*j}], v4, s[16:19], s24 offen")
    PL = 1 if opt.get("pull", 0) else 0
    A.tag = "K0a"
    if PL: pull(A)
    for j in range(8): A(f"v_mov_b32 v{72+j}, 0")
    A(f"s_waitcnt vmcnt({10+PL})")
    for j in range(10):
        src = 8 + j // 2
        A(f"v_lshlrev_b32 v{16+j}, 16, v{src}" if j % 2 == 0 else f"v_and_b32 v{16+j}, 0xffff0000, v{src}")
    for j in range(10): A(f"v_mul_f32 v{80+j}, {fbits(-math.log2(math.e))}, v{16+j}")
    for j in range(10): A(f"v_exp_f32 v{80+j}, v{80+j}")
    for j in range(10): A(f"v_add_f32 v{80+j}, 1.0, v{80+j}")
    for j in range(10): A(f"v_rcp_f32 v{80+j}, v{80+j}")
    for j in range(10): A(f"v_mul_f32 v{16+j}, v{16+j}, v{80+j}")
    for j in range(10): A(f"v_cvt_pk_bf16_f32 v{16+j}, v{16+j}, v{16+j}")
    for j in range(10): A(f"v_and_b32 v{16+j}, 0xffff0000, v{16+j}")
    for j in range(10):
        A(f"s_waitcnt vmcnt({9-j+PL})")
        for r in range(4):
            w = 32 + 4*j + r
            A(f"v_lshlrev_b32 v28, 16, v{w}")
            A(f"v_and_b32 v29, 0xffff0000, v{w}")
            A(f"v_fmac_f32 v{72+2*r}, v{16+j}, v28")
            A(f"v_fmac_f32 v{73+2*r}, v{16+j}, v29")
    A("s_nop 1")
    for sh in (4, 8):
        for j in range(8): A(f"v_add_f32_dpp v{72+j}, v{72+j}, v{72+j} row_ror:{sh} row_mask:0xf bank_mask:0xf")
    A("v_lshrrev_b32 v5, 4, v0")
    A("v_lshlrev_b32 v5, 7, v5")
    A("v_lshl_add_u32 v5, v2, 5, v5")
    A("ds_write_b128 v5, v[72:75]")
    A("ds_write_b128 v5, v[76:79] offset:16")
    A("s_waitcnt lgkmcnt(0)")
    A("s_barrier")
    A("v_cmp_gt_u32 vcc, 32, v0")
    A("s_and_saveexec_b64 s[26:27], vcc")
    A("s_cbranch_execz K0_end")
    A("v_lshlrev_b32 v5, 2, v0")
    for j in range(16): A(f"ds_read_b32 v{32+j}, v5 offset:{128*j}")
    A("s_mul_i32 s28, s2, 3277")
    A("s_lshr_b32 s28, s28, 16")
    A("s_mul_i32 s29, s28, 20")
    A("s_sub_u32 s29, s2, s29")
    A("s_lshl_b32 s29, s29, 5")
    A("v_add_u32 v6, s29, v0")
    A("s_cmp_eq_u32 s28, 1")
    A("s_cselect_b32 s30, 1.0, 0")
    A("s_cmp_eq_u32 s28, 4")
    A("s_cselect_b32 s30, 1.0, s30")
    A("s_waitcnt lgkmcnt(0)")
    for st in (8, 4, 2, 1):
        for j in range(st): A(f"v_add_f32 v{32+j}, v{32+j}, v{32+j+st}")
    A("v_cvt_pk_bf16_f32 v32, v32, v32")
    A("v_and_b32 v32, 0xffff0000, v32")
    A("v_add_f32 v32, s30, v32")
    A("v_cvt_pk_bf16_f32 v32, v32, v32")
    A("v_and_b32 v32, 0xffff0000, v32")
    A("s_lshl_b32 s31, s2, 7")
    A(f"s_add_u32 s31, s31, {WS_MOD}")
    A("buffer_store_dword v32, v5, s[20:23], s31 offen")
    A("s_sub_u32 s3, 4, s28")
    A("s_cmp_gt_u32 s3, 1")
    A("s_cbranch_scc1 K0_m2")
    A("s_mul_i32 s3, s3, 1280")
    A(f"s_add_u32 s3, s3, {WS_G2S2}")
    A("v_and_b32 v7, 0xffffffe3, v6")
    A("v_bfe_u32 v34, v6, 2, 2")
    A("v_lshl_add_u32 v7, v34, 3, v7")
    A("v_bfe_u32 v34, v6, 4, 1")
    A("v_lshl_add_u32 v7, v34, 2, v7")
    A("v_lshlrev_b32 v7, 1, v7")
    A("v_lshrrev_b32 v33, 16, v32")
    A("buffer_store_short v33, v7, s[20:23], s3 offen")
    A.label("K0_m2")
    A("s_cmp_ge_u32 s28, 2")
    A("s_cbranch_scc1 K0_end")
    A(f"v_mul_f32 v33, {fbits(QSCALE)}, v32")
    A("v_lshrrev_b32 v7, 3, v6")
    A("v_lshlrev_b32 v7, 6, v7")
    A("v_and_b32 v6, 7, v6")
    A("v_lshl_add_u32 v7, v6, 2, v7")
    A("s_cmp_eq_u32 s28, 0")
    A(f"s_cselect_b32 s31, {WS_GS1+32}, {WS_GS1}" if False else f"s_cselect_b32 s31, 32, 0")
    A(f"s_add_u32 s31, s31, {WS_GS1}")
    A("buffer_store_dword v33, v7, s[20:23], s31 offen")
    A("s_endpgm")
    A.label("K0_ln")
    A(f"s_load_dwordx2 s[8:9], s[0:1], {KA['x']}")
    A("s_sub_u32 s3, s2, 120")
    A("v_lshrrev_b32 v1, 4, v0")
    A("v_and_b32 v2, 15, v0")
    A("v_mul_u32_u24 v3, 1280, v1")
    A("v_lshl_add_u32 v3, v2, 4, v3")
    A("s_mul_i32 s24, s3, 20480")
    A("v_lshlrev_b32 v4, 8, v2")
    A("v_lshl_add_u32 v4, v1, 4, v4")
    A("s_waitcnt lgkmcnt(0)")
    srd(A, 12, 8, 2048 * 640 * 2)
    srd(A, 20, 4, WS_END)
    for j in range(5): A(f"buffer_load_dwordx4 v[{8+4*j}:{11+4*j}], v3, s[12:15], s24 offen offset:{256*j}")
    X = 32
    A.tag = "K0b"
    if PL: pull(A)
    for j in range(5):
        A(f"s_waitcnt vmcnt({4-j+PL})")
        for r in range(4):
            w = 8 + 4*j + r
            A(f"v_lshlrev_b32 v{X+8*j+2*r}, 16, v{w}")
            A(f"v_and_b32 v{X+8*j+2*r+1}, 0xffff0000, v{w}")
    def reduce16(reg):
        for sh in (1, 2, 4, 8):
            A("s_nop 1")
            A(f"v_add_f32_dpp v{reg}, v{reg}, v{reg} row_ror:{sh} row_mask:0xf bank_mask:0xf")
    for j in range(4): A(f"v_add_f32 v{72+j}, v{X+j}, v{X+4+j}")
    for e in range(8, 40): A(f"v_add_f32 v{72+e%4}, v{72+e%4}, v{X+e}")
    A("v_add_f32 v72, v72, v73"); A("v_add_f32 v74, v74, v75"); A("v_add_f32 v72, v72, v74")
    reduce16(72)
    A(f"v_mul_f32 v72, {fbits(1/640)}, v72")
    for e in range(40): A(f"v_sub_f32 v{X+e}, v{X+e}, v72")
    for j in range(4): A(f"v_mul_f32 v{76+j}, v{X+j}, v{X+j}")
    for e in range(4, 40): A(f"v_fmac_f32 v{76+e%4}, v{X+e}, v{X+e}")
    A("v_add_f32 v76, v76, v77"); A("v_add_f32 v78, v78, v79"); A("v_add_f32 v76, v76, v78")
    reduce16(76)
    A(f"v_mov_b32 v77, {fbits(1e-5)}")
    A(f"v_fmac_f32 v77, {fbits(1/640)}, v76")
    A("v_rsq_f32 v77, v77")
    A("s_nop 0")
    for e in range(40): A(f"v_mul_f32 v{X+e}, v{X+e}, v77")
    for j in range(5):
        for r in range(4): A(f"v_cvt_pk_f16_f32 v{8+4*j+r}, v{X+8*j+2*r}, v{X+8*j+2*r+1}")
        A(f"s_add_u32 s25, s24, {WS_XH + 4096*j}")
        A(f"buffer_store_dwordx4 v[{8+4*j}:{11+4*j}], v4, s[20:23], s25 offen")
    A("s_cmp_lg_u32 s3, 0")
    A("s_cbranch_scc1 K0_end")
    A("v_lshlrev_b32 v1, 5, v0")
    A("v_mov_b32 v2, 0")
    A(f"s_mov_b32 s25, {WS_CNT}")
    A("buffer_store_dword v2, v1, s[20:23], s25 offen")
    A.label("K0_end")
    A("s_endpgm")
    return dict(name="prep_kernel", lines=A.lines, vgpr=96, accum=96, sgpr=48, grid=248, block=256, lds=2048)
```

```python
from common import *
MF = "v_mfma_f32_16x16x32_bf16"
OOB = "0x7f000000"
SK, SV, SWQ = 4, 8, 12
sHEAD, sQB, sKO, sVO, sMA, sMB, sCNT, sNEGD, sRETRY = 20, 21, 23, 24, 25, 26, 27, 28, 29
sX = 30; sT = 34; sHB, sWB, sM, sM8, sSIG = 35, 36, 37, 38, 39
sALT, sALTO, sSTO, sSZ, sCSH = 46, 48, 49, 54, 55
SG_, SU_, SXO = 64, 68, 72
sTB, sCT, sA0, sAD, sBO, sTA, sTBt, sMY, sR0, sR4, sF0, sF4, sY0, sY4, sFT, sGTB, sWB2, sROT, sQROT = 76, 77, 78, 79, 80, 81, 82, 83, 84, 85, 86, 87, 88, 89, 90, 91, 92, 93, 94
sSHS, sSHD = 100, 101
def QF(qg, ks): return 8 * (qg * 4 + ks)
def QA(db, qg): return 8 * (qg * 4 + (db >> 1)) + 4 * (db & 1)
def ST(buf, kb, qg): return 8 * (qg * 4 + buf * 2 + kb) + 4
def RING(kk, qg): return 128 + (kk % 6) * 16 + qg * 4
def PF(pb, c, qg): return 128 + pb * 32 + c * 16 + qg * 4
def NM(qg): return 192 + 4 * qg
KAD, VAD, TMP, GG, SS, CT = 208, 212, 220, 224, 232, 240
WAD, GSA, L16, WDV, KVV, SHV, SHA = 244, 248, 249, 250, 251, 253, 254
SHT = 244
DUMMY = "a255"
def OT(db, qg): return (db * 4 + qg) * 4
KF, VF = 128, 160
def ONES(qg): return 192 + 4 * qg
LACC, STASH, MPREV, GST = 208, 212, 224, 228
LDS_GS = 0x20000
LDS_SH = 0x21400
LDS_FLAG = 0x8000
RED_LDS = 0x8000
LDS_TAB = 0x17000
W2POS = [0x18000, 0x20000, 0x0, 0x8000, 0x10000]
DOFF = 32.0
LMAX = 2.0 ** 60
def ACC(tg, cb): return (tg * 5 + cb) * 4
BV, XV, MV, RW, PZ, PT, STT = 224, 228, 229, 230, 234, 235, 236
RWL = [230, 231, 253, 254]
TBV, WU = 248, 252
UTA = 240
X1S = 0
G1_A = [("v", 80 + 20*s) for s in range(4)] + [("a", 20*s) for s in range(12)]
G1_B = [[("a", 240 + 4*t) for t in range(4)]] + [[("v", 160 + 16*s + 4*t) for t in range(4)] for s in range(4)]
G3_A = [("a", 20), ("a", 40), ("a", 60), ("v", 128), ("v", 148), ("v", 168), ("v", 188), ("a", 128), ("a", 148), ("a", 168),
        ("a", 96), ("a", 192), ("a", 212), ("a", 232)]
G3_B = [[("a", 80 + 4*t) for t in range(4)], [("a", 4*t) for t in range(4)], [("v", 208 + 4*t) for t in range(4)],
        [("v", 232 + 4*t) for t in range(4)], [("a", 116), ("a", 120), ("a", 124), ("a", 188)]]
def R4(fr, off=0): return (v if fr[0] == "v" else a)(fr[1] + off, 4)

def kv_dma(srd_, n, soff): return f"buffer_load_dwordx4 v{KVV + (n & 1)}, s[{srd_}:{srd_+3}], s{soff} offen offset:{1024*n} lds"
def k_read(dst, kb, ks, imm): return f"ds_read_b128 {a(dst + (kb*4+ks)*4, 4)}, v{KAD+ks} offset:{imm + kb*4096}"
def v_reads(dst, slot, h):
    return [f"ds_read_b64_tr_b16 {a(dst + (dd*2+c)*4 + 2*tt, 2)}, v{VAD + 4*h + dd} offset:{slot + 0x4000 + c*8192 + tt*4096}"
            for dd in range(4) for c in range(2) for tt in range(2)]
def qk_mfmas(buf, src, first_c):
    out = []
    for kb in range(2):
        for qg in range(4):
            for ks in range(4):
                d = v(ST(buf, kb, qg), 4)
                out.append(f"{MF} {d}, {a(src + (kb*4+ks)*4, 4)}, {v(QF(qg, ks), 4)}, {d if ks else first_c(qg)}")
    return out
def pv_mfmas(src, pb, h, zero_c=False):
    out = []
    for dd in range(4):
        for qg in range(4):
            for c in range(2):
                d = a(OT(4*h + dd, qg), 4)
                out.append(f"{MF} {d}, {a(src + (dd*2+c)*4, 4)}, {v(PF(pb, c, qg), 4)}, {'0' if (zero_c and c == 0) else d}")
    return out
def l_mfmas(pb, h, zero_c=False):
    return [f"{MF} {a(LACC, 4)}, {a(ONES(qg), 4)}, {v(PF(pb, h, qg), 4)}, {'0' if (zero_c and qg == 0) else a(LACC, 4)}" for qg in range(4)]
def w2_dma(j, n):
    up, q = n >> 2, n & 3
    sc_ = []
    if q == 0: sc_.append(f"s_add_u32 m0, s{sM8}, {W2POS[j] + up*4096}")
    sc_.append(f"s_add_u32 s{sT}, s{sWB2}, {j*128*3456 + q*(8*3456 - 1024)}")
    sr = SU_ if up else SG_
    return sc_, f"buffer_load_dwordx4 v{WDV}, s[{sr}:{sr+3}], s{sT} offen offset:{q*1024} lds"

def att_step(A, tpar, h, qk=True, pv=True, kread=True, dma=True, zero_c=False, toggle=False,
             endwait=None, barrier=False, extra_scal=None, tail_branch=None, side=False, dmalist=None):
    slot = tpar * 0x8000
    mf = []
    if qk: mf += qk_mfmas(h ^ 1, KF, lambda qg: v(NM(qg), 4))
    if pv: mf += pv_mfmas(VF, tpar ^ 1, h, zero_c) + l_mfmas(tpar ^ 1, h, zero_c and h == 0)
    n = len(mf)
    vr = v_reads(VF, slot, h) if pv else []
    kr = [k_read(KF, kb, ks, slot + h*8192) for kb in range(2) for ks in range(4)] if kread else []
    dm = []
    if dma:
        dm = [kv_dma(SK if h == 0 else SV, j, sKO if h == 0 else sVO) for j in range(4)]
        tgt = (sMB, 0x8000) if tpar == 0 else (sMA, 0)
        m0set = f"s_add_u32 m0, s{tgt[0]}, {tgt[1] + h*0x4000}"
        adv = f"s_add_u32 s{sKO if h == 0 else sVO}, s{sKO if h == 0 else sVO}, 0x4000"
    ex, cv = [], []
    for qg in range(4):
        for kb in range(2):
            for r in range(4):
                x = ST(h, kb, qg) + r
                ex.append(f"v_exp_f32 v{x}, v{x}")
            for p in range(2):
                x = ST(h, kb, qg) + 2*p
                cv.append(f"v_cvt_pk_bf16_f32 v{PF(tpar, h, qg) + kb*2 + p}, v{x}, v{x+1}")
    tg = [f"v_xor_b32 v{VAD+j}, 0x10000, v{VAD+j}" for j in range(8)] + [f"v_xor_b32 v{KAD+j}, 0x10000, v{KAD+j}" for j in range(4)] if toggle else []
    if qk and pv:
        S = {g: [] for g in range(68)}; Mm = {g: [] for g in range(68)}; Vv = {g: [] for g in range(68)}
        vpl = list(zip(range(1, 20, 2), [2, 2, 1, 2, 1, 2, 1, 2, 1, 2]))
        dg, mg, ag = (23, 27, 47, 51), 21, 53
        if side:
            vpl = list(zip((3, 5, 7, 9, 11, 13, 15, 17, 19, 21, 25), [2, 1, 2, 1, 2, 1, 2, 1, 2, 1, 1]))
            dg, mg, ag = (47, 51, 55, 59), 45, 61
            Mm[1] = [f"ds_read_b64_tr_b16 {v(SHT + 2*tt, 2)}, v{SHA} offset:{512*tt}" for tt in range(2)]
            sl = [f"s_cmp_eq_u32 s{sCNT}, 6",
                  f"s_cselect_b32 s{SWQ}, s{sALT}, s{SWQ}", f"s_cselect_b32 s{SWQ+1}, s{sALT+1}, s{SWQ+1}",
                  f"s_cselect_b32 s{SWQ+2}, {640*1728*2}, s{SWQ+2}", f"s_cselect_b32 s{sSHS}, s{sALTO}, s{sSHS}",
                  f"s_cmp_lt_u32 s{sCNT}, 6", f"s_cselect_b32 s{SWQ+2}, 0, s{SWQ+2}",
                  f"s_sub_u32 s{sSTO}, s{sCNT}, 6", f"s_cmp_lt_u32 s{sSTO}, 8", f"s_cselect_b32 s{sSTO}, s{sSHD}, {OOB}",
                  f"s_add_u32 s{sSHD}, s{sSHD}, 1024", f"s_lshr_b32 s3, s{sM}, 2", f"s_add_u32 m0, s3, {LDS_SH}"]
            for i, x in enumerate(sl): S[2 + i].append(x)
            S[22].append("s_waitcnt lgkmcnt(15)")
            Mm[23] = [f"buffer_store_dwordx4 {v(SHT, 4)}, v{L16}, s[{SWS}:{SWS+3}], s{sSTO} offen sc1"]
            Mm[27] = [f"buffer_load_dwordx4 v{SHV}, s[{SWQ}:{SWQ+3}], s{sSHS} offen lds"]
            S[29].append(f"s_add_u32 s{sSHS}, s{sSHS}, 32")
        it = iter(vr)
        for g, cnt in vpl:
            for _ in range(cnt): Mm[g].append(next(it))
        it = iter(kr)
        if kr:
            for g, cnt in zip(range(33, 44, 2), [1, 2, 1, 2, 1, 1]):
                for _ in range(cnt): Mm[g].append(next(it))
        if dm:
            S[mg].append(m0set)
            for g, x in zip(dg, dm): Mm[g].append(x)
            S[ag].append(adv)
        if dmalist:
            for g, (sc_, x) in zip((23, 27, 31, 47, 51, 55, 59, 63), dmalist):
                for i, y in enumerate(sc_): S[g - len(sc_) + i].append(y)
                Mm[g].append(x)
        S[31].append("s_waitcnt lgkmcnt(0)")
        for i, x in enumerate(ex): Vv[2*i].append(x)
        for i, x in enumerate(cv): Vv[4*i + 5].append(x)
        for g, x in zip((31, 31, 45, 49, 53, 55, 55, 57, 59, 59, 63, 63), tg): Vv[g].append(x)
        for g, x in (extra_scal or {}).items(): S[g].append(x)
        S[66].append(endwait)
        if barrier: S[67].append("s_barrier")
        emit_gaps(A, mf, [S[g] + Mm[g] + Vv[g] for g in range(68)])
    else:
        valu = []
        for i in range(len(ex)):
            valu.append((ex[i], 2))
            if i >= 3 and i % 2 == 1: valu.append((cv[(i - 3) // 2], 1))
        valu.append(("s_nop 0", 1)); valu.append((cv[-1], 1))
        scal, mem = {}, {}
        if qk:
            if dm:
                scal[1] = [m0set]
                for g, x in zip((3, 9, 15, 21), dm): mem[g] = [x]
                scal[23] = [adv]
            gaps, left = fill(n, scal, mem, valu[:36])
            emit_gaps(A, mf, gaps)
            A.extend(kr); A.extend(left); A.extend([x[0] for x in valu[36:]])
        else:
            A.extend(vr)
            A.extend([x[0] for x in valu[:8]])
            A("s_waitcnt lgkmcnt(0)")
            gaps, left = fill(n, scal, mem, valu[8:])
            emit_gaps(A, mf, gaps)
            A.extend(left)
        A.extend(tg)
        for g, x in (extra_scal or {}).items(): A(x)
        if endwait: A(endwait)
        if barrier: A("s_barrier")
    if tail_branch: A(tail_branch)

def ks_loads(o, opt):
    NI = 32 if o else 14
    AS, BS = (G1_A, G1_B) if o else (G3_A, G3_B)
    rot = o and opt.get("rot", 1)
    def pos(i, st_, base, stride):
        if rot: return [f"s_add_u32 s{st_}, s{sROT}, {i & 7}", f"s_and_b32 s{st_}, s{st_}, 7", f"s_mul_i32 s{st_}, s{st_}, {stride}",
                        f"s_add_u32 s{st_}, s{st_}, s{base}"] + ([f"s_add_u32 s{st_}, s{st_}, {(i & ~7)*stride}"] if i >= 8 else [])
        out = [f"s_add_u32 s{st_}, s{base}, {i*stride + (0 if o or st_ != sTA else 128*40960)}"]
        if not o and i == NI - 1: out += [f"s_cmp_lt_u32 s{sWAVE}, 2", f"s_cselect_b32 s{st_}, s{st_}, {OOB}"]
        return out
    def a_load(i, cb):
        sc_ = pos(i, sTA, sA0, 0 if (o and opt.get("fakeA")) else 163840) if cb == 0 else ([f"s_add_u32 s{sTA}, s{sTA}, s{sAD}"] if cb == 4 else [])
        return sc_, f"buffer_load_dwordx4 {R4(AS[i % 16], 4*cb)}, v{L16}, s[{SWS}:{SWS+3}], s{sTA} offen offset:{1024*(cb & 3)} {opt.get('aflag', 'sc1')}"
    def b_load(i, tg):
        sc_ = pos(i, sTBt, sBO, 0 if (o and opt.get("fakeB")) else 4096) if tg == 0 else []
        return sc_, f"buffer_load_dwordx4 {R4(BS[i % 5][tg])}, v{BV+tg}, s[{SWS}:{SWS+3}], s{sTBt} offen {opt.get('bflag', 'sc1')}"
    return a_load, b_load

def emit_setup_late(A, opt):
    srd(A, SK, pK, 1 << 24)
    srd(A, SV, pV, 1 << 24)
    A("v_bfe_u32 v6, v2, 2, 2")
    A("v_and_b32 v7, 3, v2")
    A("v_lshl_add_u32 v8, v3, 3, v6")
    A("v_lshlrev_b32 v8, 8, v8")
    A("v_lshl_add_u32 v8, v7, 4, v8")
    for ks in range(4):
        A(f"v_xor_b32 v9, {ks}, v6")
        A(f"v_lshl_add_u32 v{WAD+ks}, v9, 6, v8")
    A(f"v_lshlrev_b32 v{GSA}, 6, v3")
    A(f"v_add_u32 v{GSA}, {LDS_GS}, v{GSA}")
    for j in range(2):
        A(f"v_lshl_add_u32 v9, v3, 1, {8*j}")
        A("v_xor_b32 v9, v9, v4")
        A("v_lshlrev_b32 v9, 4, v9")
        A("v_lshl_add_u32 v9, v3, 8, v9")
        A(f"v_add_u32 v{KVV+j}, s{sM}, v9")
    A("v_and_b32 v10, 7, v4")
    A("v_lshlrev_b32 v10, 1, v10")
    A("v_xor_b32 v10, v10, v3")
    for ks in range(4):
        A(f"v_xor_b32 v9, {4*ks}, v10")
        A("v_lshlrev_b32 v9, 4, v9")
        A("v_lshl_add_u32 v9, v4, 8, v9")
        A(f"v_accvgpr_write_b32 a{STASH+ks}, v9")
    A("v_lshrrev_b32 v12, 2, v2")
    A("v_lshlrev_b32 v11, 8, v12")
    A("v_lshl_add_u32 v11, v7, 3, v11")
    A("v_add_u32 v11, 0x10000, v11")
    A("v_and_b32 v10, 7, v12")
    for db in range(8):
        A(f"v_xor_b32 v9, {db}, v10")
        A("v_lshl_add_u32 v9, v9, 5, v11")
        A(f"v_accvgpr_write_b32 a{STASH+4+db}, v9")
    A("v_mov_b32 v10, 0x3f803f80")
    for qg in range(4):
        A(f"v_cmp_eq_u32 vcc, {qg}, v7")
        A("s_nop 1")
        A("v_cndmask_b32 v9, 0, v10, vcc")
        for r in range(4): A(f"v_accvgpr_write_b32 a{ONES(qg)+r}, v9")
    A("v_mov_b32 v9, 0xff800000")
    for qg in range(4): A(f"v_accvgpr_write_b32 a{MPREV+qg}, v9")
    A(f"s_mov_b32 s{sNEGD}, {fbits(-DOFF)}")
    A(f"s_mov_b32 s{sRETRY}, 0")
    A(f"s_cmp_eq_u32 s{sWAVE}, 0")
    A(f"s_cselect_b32 s{sSIG}, 4, 0")
    A(f"s_mov_b32 s{sKO}, s{sHB}")
    A(f"s_mov_b32 s{sVO}, s{sHB}")
    A(f"s_mov_b32 s{sCSH}, {WS_CNT + 256*CNT_SH}")
    A("v_lshrrev_b32 v9, 1, v2")
    A(f"v_mul_u32_u24 v{SHV}, 1280, v9")
    A("v_and_b32 v9, 1, v2")
    A(f"v_lshl_add_u32 v{SHV}, v9, 4, v{SHV}")
    A(f"s_lshr_b32 s3, s{sM}, 2")
    A(f"s_add_u32 s3, s3, {LDS_SH}")
    A(f"v_lshl_add_u32 v{SHA}, v2, 3, s3")
    A("s_lshl_b32 s3, s2, 2")
    A(f"s_add_u32 s3, s3, s{sWAVE}")
    A("s_and_b32 s98, s3, 511")
    A("s_mul_i32 s99, s98, 6554")
    A("s_lshr_b32 s99, s99, 16")
    A(f"s_mul_i32 s{sALTO}, s99, {40960 - 1280}")
    A("s_lshl_b32 s98, s98, 7")
    A(f"s_add_u32 s{sALTO}, s{sALTO}, s98")
    A("s_cmp_ge_u32 s3, 512")
    A(f"s_cselect_b32 s{sALT}, s{pWU}, s{pWG}")
    A(f"s_cselect_b32 s{sALT+1}, s{pWU+1}, s{pWG+1}")
    A(f"s_and_b32 s{sALT+1}, s{sALT+1}, 0xffff")
    A("s_min_u32 s3, s3, 909")
    A("s_mul_i32 s98, s3, 13108")
    A("s_lshr_b32 s98, s98, 16")
    A("s_mul_i32 s99, s98, 5")
    A("s_sub_u32 s99, s3, s99")
    A(f"s_lshl_b32 s{sSHD}, s3, 13")
    A(f"s_add_u32 s{sSHD}, s{sSHD}, {WS_WSH - 1024}")
    A("s_and_b32 s3, s98, 127")
    A(f"s_mul_i32 s{sSHS}, s3, 40960")
    A("s_lshl_b32 s99, s99, 8")
    A(f"s_add_u32 s{sSHS}, s{sSHS}, s99")
    A("s_cmp_ge_u32 s98, 128")
    A(f"s_cselect_b32 s{pWO}, s{pWD}, s{pWO}")
    A(f"s_cselect_b32 s{pWO+1}, s{pWD+1}, s{pWO+1}")
    A(f"s_cselect_b32 s{sSZ}, 54, 0x80")
    A(f"s_mul_i32 s{sSZ}, s{sSZ}, 40960")
    A(f"s_lshl_b32 s{sTB}, s{sHEAD}, 2")
    A(f"s_mov_b32 s{sCT}, s{sQB}")
    A(f"s_and_b32 s99, s{sCT}, 1")
    A(f"s_mul_i32 s3, s{sCT}, 5")
    A("s_add_u32 s98, s3, s99")
    A("s_xor_b32 s99, s99, 1")
    A("s_lshl_b32 s99, s99, 2")
    A("s_add_u32 s99, s3, s99")
    A(f"s_mul_i32 s3, s{sWAVE}, 40960")
    A(f"s_add_u32 s3, s3, {WS_WSH}")
    A(f"s_lshl_b32 s{sA0}, s98, 10"); A(f"s_add_u32 s{sA0}, s{sA0}, s3")
    A(f"s_sub_u32 s{sAD}, s99, s98"); A(f"s_lshl_b32 s{sAD}, s{sAD}, 10")
    A(f"s_add_u32 s{sMY}, s{sTB}, s{sWAVE}")
    A(f"s_lshl_b32 s{sBO}, s{sTB}, 17")
    A(f"s_lshr_b32 s3, s{sM}, 2")
    A(f"s_add_u32 s{sBO}, s{sBO}, s3")
    A(f"s_add_u32 s{sBO}, s{sBO}, {WS_O}")
    A(f"s_mul_i32 s3, s{sMY}, 20480")
    A(f"s_lshl_b32 s{sR0}, s98, 5"); A(f"s_add_u32 s{sR0}, s{sR0}, s3")
    A(f"s_lshl_b32 s{sR4}, s99, 5"); A(f"s_add_u32 s{sR4}, s{sR4}, s3")
    A(f"s_lshl_b32 s{sF0}, s98, 6"); A(f"s_add_u32 s{sF0}, s{sF0}, {WS_MOD + 5*2560}")
    A(f"s_lshl_b32 s{sF4}, s99, 6"); A(f"s_add_u32 s{sF4}, s{sF4}, {WS_MOD + 5*2560}")
    A(f"s_add_u32 s3, s3, {WS_Y}")
    A(f"s_lshl_b32 s{sY0}, s98, 9"); A(f"s_add_u32 s{sY0}, s{sY0}, s3")
    A(f"s_lshr_b32 s{sY4}, s99, 1"); A(f"s_lshl_b32 s{sY4}, s{sY4}, 10"); A(f"s_add_u32 s{sY4}, s{sY4}, s3")
    A("s_and_b32 s3, s99, 1"); A("s_lshl_b32 s3, s3, 3"); A(f"s_add_u32 s{sY4}, s{sY4}, s3")
    A(f"s_and_b32 s3, s{sHEAD}, 3"); A("s_lshl_b32 s3, s3, 1"); A(f"s_add_u32 s{sROT}, s3, s{sCT}")
    srd(A, SXO, pX, 2048 * 640 * 2)
    g = GST
    for tg in range(4):
        A(f"s_add_u32 s3, s{sWAVE}, {tg}"); A("s_and_b32 s3, s3, 3"); A("s_lshl_b32 s3, s3, 17")
        A(f"v_add_u32 v9, s3, v{L16}"); A(f"v_accvgpr_write_b32 a{g}, v9"); g += 1
    A("v_mul_u32_u24 v9, 1280, v4"); A("v_lshl_add_u32 v9, v3, 3, v9"); A(f"v_accvgpr_write_b32 a{g}, v9"); g += 1
    A("v_lshlrev_b32 v9, 4, v3"); A(f"v_accvgpr_write_b32 a{g}, v9"); g += 1
    for j in range(4):
        A(f"s_add_u32 s3, s{sWAVE}, {j}"); A("s_and_b32 s3, s3, 3"); A("s_mul_i32 s3, s3, 15360")
        A(f"s_add_u32 s3, s3, {RED_LDS + max(j-1, 0)*5120}")
        A(f"v_add_u32 v9, s3, v{L16}"); A(f"v_accvgpr_write_b32 a{g}, v9"); g += 1
    A("v_lshlrev_b32 v9, 4, v0")
    A(f"v_add_u32 v9, {WS_G2S2}, v9")
    for base, which in ((160, 2), (180, 4)):
        A(f"v_subrev_u32 v10, {base}, v0")
        A("v_lshlrev_b32 v11, 4, v10")
        A(f"s_sub_u32 s3, s{sF0}, {(5-which)*2560}")
        A("v_add_u32 v13, s3, v11")
        A(f"v_cmp_le_u32 vcc, {base}, v0" if base <= 64 else f"v_cmp_le_u32 vcc, {base}, v0")
        A(f"s_sub_u32 s3, s{sF4}, {(5-which)*2560 + 256}")
        A("v_add_u32 v11, s3, v11")
        A("v_cndmask_b32 v9, v9, v13, vcc")
        A(f"v_cmp_le_u32 vcc, {base + 16}, v0")
        A("s_nop 1")
        A("v_cndmask_b32 v9, v9, v11, vcc")
    A(f"v_accvgpr_write_b32 a{g}, v9"); g += 1
    A("s_bfe_u32 s3, s2, 0x20001")
    A("s_mul_i32 s3, s3, 27")
    A("s_lshr_b32 s98, s2, 3")
    A("s_add_u32 s3, s3, s98")
    A(f"s_lshr_b32 s{sFT}, s3, 2")
    A("s_and_b32 s3, s3, 3")
    A("s_and_b32 s98, s2, 1")
    A("s_lshl_b32 s98, s98, 2")
    A(f"s_add_u32 s{sGTB}, s3, s98")
    A(f"s_mul_i32 s{sWB2}, s{sWAVE}, {32*3456}")
    A(f"s_lshl_b32 s3, s{sFT}, 7")
    A(f"s_add_u32 s{sWB2}, s{sWB2}, s3")
    A("s_cmp_lt_u32 s2, 216")
    A(f"s_cselect_b32 s98, {640*1728*2}, 0")
    srd(A, SG_, pWG, "s98")
    srd(A, SU_, pWU, "s98")
    A("v_lshrrev_b32 v10, 3, v2")
    A("v_and_b32 v11, 6, v10")
    A("v_and_b32 v9, 7, v2")
    A("v_xor_b32 v9, v9, v11")
    A("v_mul_u32_u24 v10, 3456, v10")
    A("v_lshl_add_u32 v9, v9, 4, v10")
    A(f"v_accvgpr_write_b32 a{g}, v9"); g += 1
    return g

def emit_attn(A, st, opt):
    vm = VM()
    A(f"s_load_dwordx16 s[44:59], s[0:1], 0")
    A(f"s_load_dwordx2 s[{pWS}:{pWS+1}], s[0:1], {KA['ws']}")
    A(f"s_load_dwordx2 s[{pWD}:{pWD+1}], s[0:1], {KA['wd']}")
    A(f"s_load_dwordx2 s[{pOUT}:{pOUT+1}], s[0:1], {KA['out']}")
    npf = code_prefetch(A, None, 32768, SHV, DUMMY, 98)
    for _ in range(npf): vm.issue("pf")
    A("v_lshrrev_b32 v1, 6, v0")
    A("v_and_b32 v2, 63, v0")
    A(f"v_readfirstlane_b32 s{sWAVE}, v1")
    A("s_and_b32 s3, s2, 7")
    A("s_lshl_b32 s3, s3, 2")
    A("s_bfe_u32 s34, s2, 0x20003")
    A(f"s_add_u32 s{sHEAD}, s3, s34")
    A(f"s_lshr_b32 s{sQB}, s2, 5")
    A(f"s_lshl_b32 s{sM}, s{sWAVE}, 12")
    A(f"s_lshl_b32 s{sM8}, s{sWAVE}, 13")
    A(f"s_lshl_b32 s{sHB}, s{sHEAD}, 19")
    A(f"s_lshl_b32 s{sWB}, s{sHEAD}, 8")
    A(f"s_lshl_b32 s3, s{sWAVE}, 18")
    A(f"s_add_u32 s{sWB}, s{sWB}, s3")
    qrot = opt.get("qrot", 1)
    if qrot == 0: A("s_mov_b32 s4, 0")
    elif qrot == 1: A(f"s_mov_b32 s4, s{sQB}")
    else: A(f"s_add_u32 s4, s{sQB}, s34")
    for _ in range(2 if qrot == 2 else 1):
        A("s_sub_u32 s3, s4, 5"); A("s_cselect_b32 s4, s4, s3")
    RS = [sF0, sF4, sY0, sY4, sFT]
    RS = [23, 24, 25, 26, 27]
    RS = [60+0]*5 if False else [5, 6, 7, 8, 9]
    A("s_lshl_b32 s5, s4, 12")
    for j in range(1, 5):
        A(f"s_add_u32 s{5+j}, s{4+j}, 4096"); A(f"s_cmp_eq_u32 s{5+j}, 20480"); A(f"s_cselect_b32 s{5+j}, 0, s{5+j}")
    QR = [25, 26, 27, sQROT, 95]
    for j in range(5): A(f"s_mov_b32 s{QR[j]}, s{5+j}")
    A(f"s_lshl_b32 s3, s{sQB}, 2")
    A(f"s_add_u32 s3, s3, s{sWAVE}")
    A(f"s_mul_i32 s{sSTO}, s3, {4*20480}" if False else f"s_mul_i32 s10, s3, {4*20480}")
    A(f"s_mov_b32 s{sTA}, s10")
    A(f"v_lshlrev_b32 v{L16}, 4, v2")
    A("v_lshrrev_b32 v3, 4, v2")
    A("v_and_b32 v4, 15, v2")
    A("v_lshlrev_b32 v5, 2, v3")
    A("v_xor_b32 v5, v5, v4")
    A("v_lshlrev_b32 v5, 4, v5")
    A(f"v_lshl_add_u32 v{WDV}, v3, 13, v5")
    def x_base(j): return [f"s_add_u32 s{sX}, s{sTA}, s{QR[j]}"] + [f"s_add_u32 s{sX+q}, s{sX}, {q*20480}" for q in range(1, 4)]
    A.extend(x_base(0))
    A("s_waitcnt lgkmcnt(0)")
    srd(A, SWS, pWS, WS_END)
    srd(A, SWQ, pWQ, 640 * 4096 * 2)
    def w_dma(j, n):
        pos = j & 3
        sc_ = []
        if n == 0: sc_ += [f"s_lshl_b32 s{sTBt}, s{QR[j]}, 8", f"s_add_u32 s{sTBt}, s{sTBt}, s{sWB}"]
        if n % 4 == 0: sc_.append(f"s_add_u32 m0, s{sM8}, {pos*0x8000 + (n >> 2)*4096}")
        sc_.append(f"s_add_u32 s{sT}, s{sTBt}, {n*32768 - (n & 3)*1024}")
        return sc_, f"buffer_load_dwordx4 v{WDV}, s[{SWQ}:{SWQ+3}], s{sT} offen offset:{(n & 3)*1024} lds"
    def x_load(kk, qg): return f"buffer_load_dwordx4 {v(RING(kk, qg), 4)}, v{L16}, s[{SWS}:{SWS+3}], s{sX+qg} offen offset:{(kk & 3)*1024}"
    for qg in range(4): A(x_load(0, qg)); vm.issue("X0")
    for n in range(8):
        sc_, d = w_dma(0, n); A.extend(sc_); A(d); vm.issue("W0")
    A(f"s_add_u32 s3, s4, s{sWAVE}"); A("s_sub_u32 s10, s3, 5"); A("s_cselect_b32 s3, s3, s10"); A("s_lshl_b32 s3, s3, 10")
    A(f"s_lshr_b32 s10, s{sM}, 2")
    A(f"s_add_u32 m0, s10, {LDS_GS}")
    A(f"s_add_u32 s{sT}, s3, {WS_GS1}")
    A(f"buffer_load_dwordx4 v{L16}, s[{SWS}:{SWS+3}], s{sT} offen lds"); vm.issue("W0")
    A(f"s_mov_b32 m0, {LDS_GS + 4096}")
    A(f"s_lshr_b32 s3, s{QR[4]}, 2")
    A(f"s_add_u32 s{sT}, s3, {WS_GS1}")
    A(f"buffer_load_dwordx4 v{L16}, s[{SWS}:{SWS+3}], s{sT} offen lds"); vm.issue("W0")
    for kk in range(1, 4):
        for qg in range(4): A(x_load(kk, qg)); vm.issue(f"X{kk}")
    A.extend(x_base(1))
    for n in range(8):
        sc_, d = w_dma(1, n); A.extend(sc_); A(d); vm.issue("W1")
    for qg in range(4): A(x_load(4, qg)); vm.issue("X4")
    gend = emit_setup_late(A, opt)
    assert gend <= 255
    def wbuf(kk): return VF if kk % 2 == 0 else KF
    def w_reads(kk):
        pos = (kk >> 2) & 3
        return [f"ds_read_b64_tr_b16 {a(wbuf(kk) + db*4 + 2*tt, 2)}, v{WAD + (db >> 1)} offset:{(pos & 1)*0x8000 + (kk & 3)*8192 + tt*1024 + 8*(db & 1)}"
                for db in range(8) for tt in range(2)]
    def gs_reads(kk, hi): return [f"ds_read_b128 {v(GG + 4*hi, 4)}, v{GSA} offset:{kk*256 + 16*hi}",
                                  f"ds_read_b128 {v(SS + 4*hi, 4)}, v{GSA} offset:{kk*256 + 32 + 16*hi}"]
    def conv(kk, hi):
        out = []; pend = None; i = 0
        for r in (2*hi, 2*hi + 1):
            for qg in range(4):
                x = RING(kk, qg) + r; t = CT + 2*(i & 1); i += 1
                out.append(f"v_fma_mix_f32 v{t}, v{x}, v{GG+2*r}, v{SS+2*r} op_sel_hi:[1,0,0]")
                if pend: out.append(pend)
                out.append(f"v_fma_mix_f32 v{t+1}, v{x}, v{GG+2*r+1}, v{SS+2*r+1} op_sel:[1,0,0] op_sel_hi:[1,0,0]")
                pend = f"v_cvt_pk_bf16_f32 v{x}, v{t}, v{t+1}"
        out.append(pend)
        return out
    A(f"s_waitcnt vmcnt({vm.need('W0', 'X0')})")
    A("s_barrier")
    st(1)
    A.extend(gs_reads(0, 0)); A.extend(gs_reads(0, 1)); A.extend(w_reads(0)[:8])
    A("s_waitcnt lgkmcnt(8)")
    A.extend(w_reads(0)[8:])
    A.extend(conv(0, 0))
    A.extend(gs_reads(1, 0))
    A.extend(conv(0, 1))
    A("s_waitcnt lgkmcnt(0)")
    dl = []
    for j, k0 in ((2, 0), (3, 3), (4, 7)):
        for n in range(8):
            sc_, d = w_dma(j, n); dl.append((k0, sc_, d, f"W{j}"))
    carry = []
    def kvgrp(k0, pos, isv, tag):
        so = sVO if isv else sKO
        for n in range(4):
            sc_ = (carry[:] + [f"s_add_u32 m0, s{sM}, {pos*0x8000 + isv*0x4000}"]) if n == 0 else []
            dl.append((k0, sc_, kv_dma(SV if isv else SK, n, so), tag))
        carry[:] = [f"s_add_u32 s{so}, s{so}, 0x4000"]
    kvgrp(11, 1, 0, "A-1"); kvgrp(13, 2, 0, "A0"); kvgrp(15, 3, 0, "A1"); kvgrp(17, 3, 1, "A1")
    quota = {0: 3, 1: 3}
    for kk in range(20):
        mf = [f"{MF} {v(QA(db, qg), 4)}, {a(wbuf(kk) + db*4, 4)}, {v(RING(kk, qg), 4)}, {v(QA(db, qg), 4) if kk else '0'}"
              for db in range(8) for qg in range(4)]
        nd = quota.get(kk, 2)
        mydma = []
        while dl and dl[0][0] <= kk and nd > 0:
            mydma.append(dl.pop(0)); nd -= 1
        xl = [(x_load(kk + 5, qg), f"X{kk+5}") for qg in range(4)] if kk + 5 < 20 else []
        if kk < 19:
            w = vm.need(f"X{kk+1}")
            wr = w_reads(kk + 1)
            tog = [f"v_xor_b32 v{WAD+j}, 0x10000, v{WAD+j}" for j in range(4)] if kk in (6, 14) else []
            gaps = []
            vslots = [5, 8, 13, 19, 23, 28, 30]
            vmem = {}; scal = {}
            seq = []
            xi = list(xl); di = list(mydma)
            while xi or di:
                if xi: seq.append(("x",) + xi.pop(0))
                if xi: seq.append(("x",) + xi.pop(0))
                if di: seq.append(("d",) + di.pop(0))
            if w is not None: scal[0] = [f"s_waitcnt vmcnt({w})"]
            if xl and (kk + 5) % 4 == 0:
                for q, x in enumerate(x_base((kk + 5) // 4)): scal.setdefault(1 + q, []).append(x)
            prev = -1
            for g, it in zip(vslots, seq):
                if it[0] == "x":
                    vmem[g] = [it[1]]; vm.issue(it[2])
                else:
                    for i, x in enumerate(it[2]): scal.setdefault(max(g - len(it[2]) + i, prev + 1), []).append(x)
                    vmem[g] = [it[3]]; vm.issue(it[4])
                prev = g
            for hi in range(2):
                ds = (gs_reads(kk + 1, 1) if hi == 0 else (gs_reads(kk + 2, 0) if kk + 2 < 20 else [])) + wr[8*hi:8*hi + 8]
                mem = {g - 16*hi: x for g, x in vmem.items() if g // 16 == hi}
                sc2 = {g - 16*hi: x for g, x in scal.items() if g // 16 == hi}
                free = [g for g in range(0, 13) if g not in mem]
                assert len(free) >= len(ds)
                for g, x in zip(free, ds): mem[g] = [x]
                valu = [(x, 1) for x in conv(kk + 1, hi)]
                if hi == 1: valu += [(x, 1, 13) for x in tog]
                if hi == 0: sc2.setdefault(15, []).append("s_waitcnt lgkmcnt(8)")
                gp, left = fill(16, sc2, mem, valu)
                gp[15] += left
                gaps += gp
            endw = "s_waitcnt lgkmcnt(0)"
            bar = kk % 4 == 2
            if bar:
                w = vm.need(f"W{kk//4 + 1}" if kk < 18 else "A-1")
                if w is not None: endw = f"s_waitcnt vmcnt({w}) lgkmcnt(0)"
            gaps[31].insert(0, endw)
            if bar: gaps[31].insert(1, "s_barrier")
            emit_gaps(A, mf, gaps)
        else:
            assert not mydma and not dl
            for j in range(4): A(f"v_accvgpr_read_b32 v{KAD+j}, a{STASH+j}")
            mem = {g: [k_read(VF, g >> 2, g & 3, 0x8000)] for g in range(8)}
            valu = [(f"v_accvgpr_read_b32 v{VAD+j}, a{STASH+4+j}", 1) for j in range(8)]
            for ks in range(4):
                for qg in range(4):
                    b = QF(qg, ks)
                    for p in range(4): valu.append((f"v_cvt_pk_bf16_f32 v{b+p}, v{b+2*p}, v{b+2*p+1}", 1, 8*ks + 4 + qg + 4))
            inl = [x for x in valu if len(x) < 3 or x[2] < 32][:50]
            rest = valu[len(inl):]
            B = Asm(); srd(B, SWQ, pWO, f"s{sSZ}")
            scal = {g: [x.strip()] for g, x in enumerate(carry + B.lines)}
            gaps, left = fill(32, scal, mem, inl)
            emit_gaps(A, mf, gaps)
            A.extend(left); A.extend([x[0] for x in rest])
    st(2)
    A.label("K1_att0")
    A.extend([k_read(KF, kb, ks, 0x8000 + 8192) for kb in range(2) for ks in range(4)])
    A(f"s_add_u32 s{sMA}, s{sM}, 0x10000")
    A(f"s_mov_b32 s{sMB}, s{sM}")
    A("s_waitcnt lgkmcnt(8)")
    mf = qk_mfmas(0, VF, lambda qg: "0")
    scal = {1: [f"s_mov_b32 m0, s{sM}"], 14: [f"s_add_u32 s{sKO}, s{sKO}, 0x4000"], 15: [f"s_add_u32 m0, s{sM}, 0x4000"], 30: [f"s_add_u32 s{sVO}, s{sVO}, 0x4000"]}
    mem = {}
    for n in range(4):
        mem[3 + 3*n] = [kv_dma(SK, n, sKO)]; mem[17 + 3*n] = [kv_dma(SV, n, sVO)]
    for n in range(8): vm.issue("A2")
    valu = [(f"v_accvgpr_read_b32 v{TMP+qg}, a{MPREV+qg}", 1) for qg in range(4)]
    valu += [(f"v_xor_b32 v{KAD+j}, 0x10000, v{KAD+j}", 1) for j in range(4)]
    gdst = list(range(BV, BV + 10)) + [TBV, WDV]
    valu += [(f"v_accvgpr_read_b32 v{d}, a{GST+j}", 1) for j, d in enumerate(gdst)]
    for qg in range(4):
        x = ST(0, 0, qg)
        valu.append((f"v_max3_f32 v{TMP+qg}, v{TMP+qg}, v{x}, v{x+1}", 1, 4*qg + 12))
        valu.append((f"v_max3_f32 v{TMP+qg}, v{TMP+qg}, v{x+2}, v{x+3}", 1, 4*qg + 12))
    gaps, left = fill(32, scal, mem, valu)
    emit_gaps(A, mf, gaps); A.extend(left)
    A("s_nop 1")
    for qg in range(4):
        x = ST(0, 1, qg)
        if qg == 3: A("s_nop 1")
        A(f"v_max3_f32 v{TMP+qg}, v{TMP+qg}, v{x}, v{x+1}")
        A(f"v_max3_f32 v{TMP+qg}, v{TMP+qg}, v{x+2}, v{x+3}")
    for swp in ("v_permlane32_swap_b32", "v_permlane16_swap_b32"):
        for qg in range(4): A(f"v_mov_b32 v{CT+qg}, v{TMP+qg}")
        for qg in range(4): A(f"{swp} v{CT+qg}, v{TMP+qg}")
        for qg in range(4): A(f"v_max_f32 v{TMP+qg}, v{TMP+qg}, v{CT+qg}")
    for qg in range(4):
        for r in range(4): A(f"v_sub_f32 v{NM(qg)+r}, s{sNEGD}, v{TMP+qg}")
    for qg in range(4):
        for kb in range(2):
            for r in range(0, 4, 2):
                x = ST(0, kb, qg) + r
                A(f"v_pk_add_f32 {v(x, 2)}, {v(x, 2)}, {v(NM(qg), 2)}")
    A(f"s_waitcnt vmcnt({vm.need('A0')}) lgkmcnt(0)")
    A("s_barrier")
    st(3)
    W16 = "s_waitcnt vmcnt(16) lgkmcnt(0)"; W18 = "s_waitcnt vmcnt(18) lgkmcnt(0)"; W0 = "s_waitcnt lgkmcnt(0)"
    swap = {60: f"s_xor_b32 s{sMA}, s{sMA}, 0x10000", 61: f"s_xor_b32 s{sMB}, s{sMB}, 0x10000"}
    att_step(A, 0, 0, pv=False, endwait=W0)
    att_step(A, 0, 1, pv=False, endwait=W16, barrier=True)
    att_step(A, 1, 0, zero_c=True, endwait=W0)
    att_step(A, 1, 1, zero_c=True, endwait=W16, barrier=True, toggle=True, extra_scal={**swap, 62: f"s_mov_b32 s{sCNT}, 14"})
    st(8)
    A.label("K1_loop")
    att_step(A, 0, 0, endwait=W0, side=True)
    att_step(A, 0, 1, endwait=W18, barrier=True, extra_scal={64: f"s_cmp_eq_u32 s{sCNT}, s{sSIG}"}, tail_branch="s_cbranch_scc1 K1_dosig")
    A.label("K1_sigret")
    att_step(A, 1, 0, endwait=W0)
    att_step(A, 1, 1, endwait=W16, barrier=True, toggle=True,
             extra_scal={**swap, 62: f"s_sub_u32 s{sCNT}, s{sCNT}, 1", 63: f"s_cmp_lg_u32 s{sCNT}, 0"}, tail_branch="s_cbranch_scc1 K1_loop")
    st(9)
    vm.q = ["A31"] * 8 + ["A32"] * 8 + ["W2"] * 16
    att_step(A, 0, 0, dma=False, endwait=W0, dmalist=[w2_dma(0, n) for n in range(8)])
    att_step(A, 0, 1, dma=False, endwait=f"s_waitcnt vmcnt({vm.need('A31')}) lgkmcnt(0)", barrier=True, dmalist=[w2_dma(1, n) for n in range(8)])
    A(f"v_lshlrev_b32 v{CT}, 4, v{L16}")
    A(f"v_and_b32 v{CT}, 0x700, v{CT}")
    A(f"buffer_load_dword v{CT+2}, v{CT}, s[{SWS}:{SWS+3}], s{sCSH} offen sc1"); vm.issue("C")
    A("s_getpc_b64 s[98:99]")
    A(f"v_lshl_add_u32 v{CT+1}, v{L16}, 2, s{sM}")
    for j in range(opt.get("pf2", 3)):
        A(f"global_load_dword {DUMMY}, v{CT+1}, s[98:99]"); vm.issue("pf")
        if j < 2: A(f"v_add_u32 v{CT+1}, 0x4000, v{CT+1}")
    for n in range(8): vm.issue("W2")
    att_step(A, 1, 0, dma=False, kread=False, endwait=W0, dmalist=[w2_dma(2, n) for n in range(8)])
    att_step(A, 1, 1, dma=False, kread=False, qk=False, endwait=f"s_waitcnt vmcnt({vm.need('A32')}) lgkmcnt(0)", barrier=True, toggle=True)
    st(4)
    A.extend(v_reads(VF, 0, 0))
    r1 = v_reads(KF, 0, 1)
    emit_gaps(A, l_mfmas(1, 0) + l_mfmas(1, 1), [r1[2*i:2*i + 2] for i in range(8)])
    A("s_waitcnt lgkmcnt(15)")
    G = {g: [] for g in range(32)}
    G[0] = [f"s_mov_b32 s3, {fbits(opt.get('lmax', LMAX))}"]
    G[1] = [f"s_lshl_b32 s98, s{sWAVE}, 2"]; G[2] = [f"s_add_u32 s98, s98, {LDS_FLAG}", f"v_mov_b32 v{CT+1}, s98"]
    G[4] = [f"v_accvgpr_read_b32 v{TMP}, a{LACC}", f"v_accvgpr_read_b32 v{TMP+1}, a{LACC+1}"]
    G[5] = [f"v_accvgpr_read_b32 v{TMP+2}, a{LACC+2}", f"v_accvgpr_read_b32 v{TMP+3}, a{LACC+3}"]
    G[6] = [f"v_add_f32 v{STT}, v{TMP}, v{TMP+1}", f"v_add_f32 v{STT+1}, v{TMP+2}, v{TMP+3}"]
    G[7] = [f"v_add_f32 v{STT}, v{STT}, v{STT+1}"]
    G[8] = [f"v_cmp_nge_f32 vcc, s3, v{STT}"]
    G[9] = [f"v_rcp_f32 v{TMP}, v{TMP}"]
    G[10] = ["s_or_b32 s3, vcc_lo, vcc_hi", f"v_mov_b32 v{CT+3}, s3"]
    G[11] = [f"ds_write_b32 v{CT+1}, v{CT+3}", f"v_mov_b32 v{CT+1}, {LDS_FLAG}"]
    for q in range(1, 4): G[11 + q] = [f"v_rcp_f32 v{TMP+q}, v{TMP+q}"]
    G[12].insert(0, f"s_lshl_b32 s3, s{sQB}, 2"); G[13].insert(0, f"s_add_u32 s3, s3, s{sWAVE}"); G[14].insert(0, "s_lshl_b32 s3, s3, 19")
    G[15] = [f"s_lshl_b32 s98, s{sHEAD}, 12"]
    G[16] = ["s_waitcnt lgkmcnt(0)"]
    G[17] = ["s_barrier"]
    G[18] = ["s_add_u32 s3, s3, s98", f"ds_read_b128 {v(STT, 4)}, v{CT+1}"]
    for qg in range(4): G[19 + qg] = [f"s_add_u32 s{sX+qg}, s3, {WS_O + qg*131072}"]
    G[23] = [f"s_lshr_b32 s3, s{sM}, 2"]
    G[24] = [f"s_add_u32 m0, s3, {LDS_TAB}"]
    G[25] = [f"s_waitcnt vmcnt({vm.need('C')}) lgkmcnt(0)", f"v_or3_b32 v{STT}, v{STT}, v{STT+1}, v{STT+2}", f"v_or_b32 v{STT}, v{STT}, v{STT+3}"]
    G[26] = [f"buffer_load_dwordx4 v{TBV}, s[{SWS}:{SWS+3}], 0 offen lds"]; vm.issue("TAB")
    G[27] = [f"v_cmp_ne_u32 vcc, 0, v{STT}"]
    G[29] = ["s_cbranch_vccnz K1_retry"]
    emit_gaps(A, pv_mfmas(VF, 1, 0)[:30], [G[g] for g in range(30)])
    A.label("K1_noretry")
    A(f"v_cmp_gt_u32 vcc, 32, v{CT+2}")
    emit_gaps(A, pv_mfmas(VF, 1, 0)[30:], [[], []])
    A("s_cbranch_vccnz K1_shwait")
    A.label("K1_shp_ret")
    st(40)
    a_load, b_load = ks_loads(True, opt)
    def grp(i, j, qg, pk):
        t = 16 * (i % 4); o_ = []
        for e in range(2):
            for r in range(4): o_.append(f"v_accvgpr_read_b32 v{t+4*e+r}, a{OT(2*j+e, qg)+r}")
        if pk:
            sel = "op_sel_hi:[1,0]" if qg % 2 == 0 else "op_sel:[0,1]"
            for x in range(0, 8, 2): o_.append(f"v_pk_mul_f32 {v(t+x, 2)}, {v(t+x, 2)}, {v(TMP + (qg & 2), 2)} {sel}")
        else:
            for x in range(8): o_.append(f"v_mul_f32 v{t+x}, v{t+x}, v{TMP+qg}")
        for p in range(4): o_.append(f"v_cvt_pk_bf16_f32 v{t+8+p}, v{t+2*p}, v{t+2*p+1}")
        return o_, f"buffer_store_dwordx4 {v(t+8, 4)}, v{L16}, s[{SWS}:{SWS+3}], s{sX+qg} offen offset:{1024*j} {opt.get('oflag', 'sc1')}"
    groups = [(j, qg) for j in range(4) for qg in range(4)]
    al = [(a_load(i, cb), ("A", i)) for i in (0, 1, 2, 3, 11, 12, 13, 14, 15, 4, 5, 6, 7, 8, 9, 10) for cb in range(5)]
    def issue(n):
        for _ in range(n):
            (sc_, m), tag = al.pop(0); A.extend(sc_); A(m); vm.issue(tag)
    scal, mem = {}, {}
    for g in (5, 9, 13, 19, 23, 29):
        if g == 29 or not opt.get("tailA", 1): continue
        (sc_, m), tag = al.pop(0)
        for z, x in enumerate(sc_): scal.setdefault(g - len(sc_) + z, []).append(x)
        mem[g] = [m]
    g0, s0_ = grp(0, *groups[0], False); g1, s1_ = grp(1, *groups[1], False); g2, s2_ = grp(2, *groups[2], False)
    mem[15] = [s0_]; mem[28] = [s1_]
    for tag in (("A", "A", "A", "O", "A", "A", "O") if opt.get("tailA", 1) else ("O", "O")): vm.issue(("A", 0) if tag == "A" else "O")
    gaps, left = fill(15, {g: x for g, x in scal.items() if g < 15}, {g: x for g, x in mem.items() if g < 15}, [(x, 1) for x in g0])
    assert not left
    gp2, left = fill(13, {g - 15: x for g, x in scal.items() if 15 <= g < 28}, {g - 15: x for g, x in mem.items() if 15 <= g < 28}, [(x, 1) for x in g1])
    assert not left
    gp3, left = fill(4, {}, {0: mem[28]}, [(x, 1) for x in g2[:6]])
    emit_gaps(A, pv_mfmas(KF, 1, 1), gaps + gp2 + gp3)
    st(41)
    g2p, _ = grp(2, *groups[2], True)
    A.extend(left); A.extend(g2p[6:]); A(s2_); vm.issue("O")
    for i in range(3, 16):
        o_, s_ = grp(i, *groups[i], True)
        issue(opt.get("ilv", 0))
        A.extend(o_); A(s_); vm.issue("O")
    st(5)
    issue(opt.get("presig", 10))
    st(42)
    A(f"s_lshl_b32 s3, s{sQB}, 8")
    A(f"s_add_u32 s3, s3, {WS_CNT + 256*CNT_1}")
    signal(A, 3, PZ, PT, "K1_sig", vm.need("O"))
    st(6)
    issue(len(al))
    return vm

def emit_rare(A):
    A.label("K1_dosig")
    A(f"v_mov_b32 v{CT}, 0")
    A(f"v_mov_b32 v{CT+1}, 1")
    A("s_and_b32 s3, s2, 7")
    A("s_lshl_b32 s3, s3, 8")
    A(f"s_add_u32 s3, s3, s{sCSH}")
    A("s_mov_b64 exec, 1")
    A(f"buffer_atomic_add v{CT+1}, v{CT}, s[{SWS}:{SWS+3}], s3 offen sc1")
    A("s_mov_b64 exec, -1")
    A("s_branch K1_sigret")
    A.label("K1_shwait")
    poll(A, sCSH, CT, CT+2, 32, "K1_shp")
    A("s_branch K1_shp_ret")
    A.label("K1_retry")
    A(f"s_cmp_lg_u32 s{sRETRY}, 0")
    A("s_cbranch_scc1 K1_noretry")
    for j in range(12): A(f"v_accvgpr_read_b32 v{KAD+j}, a{STASH+j}")
    for qg in range(4): A(f"v_mov_b32 v{TMP+qg}, 0xff800000")
    A(f"s_mov_b32 s{sKO}, s{sHB}")
    A(f"s_mov_b32 s{sCNT}, 32")
    A(f"s_mov_b32 m0, s{sM}")
    A("s_waitcnt vmcnt(0)")
    A.label("K1_maxloop")
    A("s_barrier")
    for n in range(4): A(kv_dma(SK, n, sKO))
    A(f"s_add_u32 s{sKO}, s{sKO}, 0x4000")
    A("s_waitcnt vmcnt(0)")
    A("s_barrier")
    for h in range(2):
        A.extend([k_read(KF, kb, ks, h*8192) for kb in range(2) for ks in range(4)])
        A("s_waitcnt lgkmcnt(0)")
        A.extend(qk_mfmas(0, KF, lambda qg: "0"))
        A("s_nop 7")
        for qg in range(4):
            for kb in range(2):
                x = ST(0, kb, qg)
                A(f"v_max3_f32 v{TMP+qg}, v{TMP+qg}, v{x}, v{x+1}")
                A(f"v_max3_f32 v{TMP+qg}, v{TMP+qg}, v{x+2}, v{x+3}")
    A(f"s_sub_u32 s{sCNT}, s{sCNT}, 1")
    A(f"s_cmp_lg_u32 s{sCNT}, 0")
    A("s_cbranch_scc1 K1_maxloop")
    for qg in range(4): A(f"v_accvgpr_write_b32 a{MPREV+qg}, v{TMP+qg}")
    A(f"s_mov_b32 s{sKO}, s{sHB}")
    A(f"s_mov_b32 s{sVO}, s{sHB}")
    for pos, isv in ((1, 0), (2, 0), (3, 0), (3, 1)):
        A(f"s_add_u32 m0, s{sM}, {pos*0x8000 + isv*0x4000}")
        A("s_nop 0")
        for n in range(4): A(kv_dma(SV if isv else SK, n, sVO if isv else sKO))
        so = sVO if isv else sKO
        A(f"s_add_u32 s{so}, s{so}, 0x4000")
    A(f"s_mov_b32 s{sNEGD}, 0")
    A(f"s_mov_b32 s{sRETRY}, 1")
    A(f"s_mov_b32 s{sSIG}, 0")
    A(f"s_mov_b32 s{sSHD}, {OOB}")
    A("s_waitcnt vmcnt(0)")
    A("s_barrier")
    A.extend([k_read(VF, kb, ks, 0x8000) for kb in range(2) for ks in range(4)])
    A("s_branch K1_att0")

def w2_off(kk):
    return kk >> 3, (kk & 7) * 8192
def ut_reads(kk, dst): return [f"ds_read_b64_tr_b16 {(v if dst[0] == 'v' else a)(dst[1] + up*4 + 2*tt, 2)}, v{WU} offset:{w2_off(kk)[1] + up*4096 + tt*2048}"
                               for up in range(2) for tt in range(2)]
def ut_mfmas(kk, src): return [f"{MF} {v(UTA + 4*up, 4)}, {R4(src, 4*up)}, {a(4*kk, 4)}, {v(UTA + 4*up, 4) if kk else '0'}" for up in range(2)]
def w2_addr(A, dst, fb_operand):
    return [f"v_bfe_u32 v{PT}, v{L16}, 7, 2", f"v_xor_b32 v{PT}, {fb_operand}, v{PT}", f"v_lshl_add_u32 v{dst}, v{PT}, 5, v{PZ}"]
def w2_base(): return [f"v_lshrrev_b32 v{PZ}, 6, v{L16}", f"v_lshlrev_b32 v{PZ}, 7, v{PZ}", f"v_bfe_u32 v{PT}, v{L16}, 4, 2",
                       f"v_lshl_add_u32 v{PZ}, v{PT}, 3, v{PZ}", f"v_add_u32 v{PZ}, 0x18000, v{PZ}"]

def emit_ks(A, st, o, opt, s0, vm):
    NI = 32 if o else 14
    P = "G1" if o else "G3"
    AS, BS = (G1_A, G1_B) if o else (G3_A, G3_B)
    a_load, b_load = ks_loads(o, opt)
    def issue(x, tag): A.extend(x[0]); A(x[1]); vm.issue(tag)
    EX, EG, EH = 80, 100, 120
    S3 = 120
    A("s_and_b32 s3, s2, 7")
    A("s_lshl_b32 s3, s3, 8")
    A(f"s_add_u32 s3, s3, {WS_CNT + 256*(CNT_1 if o else CNT_3)}")
    st(s0)
    wait_group(A, 3, PZ, PT, 32 if o else 27, f"{P}_wait")
    st(s0 + 1)
    for i in range(4):
        for tg in range(4): issue(b_load(i, tg), ("B", i))
    sched = {i: [] for i in range(NI)}
    dsx = {i: [] for i in range(NI)}; mfx = {i: [] for i in range(NI)}; vax = {i: [] for i in range(NI)}
    for i in range(NI - 4):
        for tg in range(4): sched[i].append((b_load(i + 4, tg), ("B", i + 4)))
    if o:
        for n in range(80): sched[1 + n // 3].append((a_load(16 + n // 5, n % 5), ("A", 16 + n // 5)))
        for cb in range(5):
            sched[28].append((([], f"buffer_load_dwordx2 {v(EX+2*cb, 2)}, v{XV}, s[{SXO}:{SXO+3}], s{sR0 if cb < 4 else sR4} offen offset:{32*(cb & 3)}"), "E"))
        vax[2] = [f"v_mov_b32 v{RWL[2]}, v{RW+2}", f"v_mov_b32 v{RWL[3]}, v{RW+3}"] + w2_base() + w2_addr(A, WU, f"s{sWAVE}") + [f"v_add_u32 v{TBV}, {LDS_TAB}, v{MV}",
                 f"v_and_b32 v{PT}, 16, v{L16}", f"v_mul_u32_u24 v{PT}, 80, v{PT}", f"v_add_u32 v{KVV}, v{PT}, v{TBV}"]
        for cb in range(5):
            dsx[20].append(f"ds_read_b128 {v(EG+4*cb, 4)}, v{TBV} offset:{2560 + 64*cb}")
            dsx[20].append(f"ds_read_b128 {v(EH+4*cb, 4)}, v{TBV} offset:{2880 + 64*cb}")
        for kk in range(20): dsx[21 + kk // 5].append(f"ds_read_b128 {a(4*kk, 4)}, v{KVV} offset:{64*kk}")
        for p in range(6):
            tmp = ("v", 140) if p % 2 == 0 else ("a", 80)
            for e in range(2):
                kk = 2*p + e
                dsx[24 + p] += ut_reads(kk, (tmp[0], tmp[1] + 8*e))
                mfx[25 + p] += ut_mfmas(kk, (tmp[0], tmp[1] + 8*e))
        vax[27] = [f"v_subrev_u32 v{WU}, 0x18000, v{WU}"]
    else:
        A(f"s_lshl_b32 s3, s{sMY}, 10")
        A(f"s_add_u32 s3, s3, {WS_ST}")
        issue(([], f"buffer_load_dwordx4 {v(S3, 4)}, v{L16}, s[{SWS}:{SWS+3}], s3 offen sc1"), "E")
        vax[10] = ln_stats(A, S3, None, S3+4, S3+5, want="r2")
        vax[11] = [f"v_mul_f32 v{EG+x}, v{EG+x}, v{S3+5}" for x in range(20)]
    A(f"s_waitcnt vmcnt({vm.need(('A', 0), ('B', 0))})")
    st(s0 + 2)
    for i in range(NI):
        last = i == NI - 1
        order = [(tg, cb) for cb in range(5) for tg in range(4)] if not last else [(tg, cb) for tg in (1, 2, 3, 0) for cb in range(5)]
        mf = [f"{MF} {v(ACC(tg, cb), 4)}, {R4(AS[i % 16], 4*cb)}, {R4(BS[i % 5][tg])}, {v(ACC(tg, cb), 4) if i else '0'}" for tg, cb in order]
        mf = mfx[i] + mf
        if o and opt.get("nomf") and 0 < i < NI - 1: mf = ["s_nop 0"] * len(mf)
        n = len(mf)
        scal, mem = {}, {}
        assert len(sched[i]) <= 9
        for q, ((sc_, m), tag) in enumerate(sched[i]):
            g = 2*q + 1
            scal.setdefault(g - 1, []).extend(sc_)
            mem[g] = [m]; vm.issue(tag)
        for q, x in enumerate(dsx[i]): mem.setdefault(2*(q // 2), []).append(x)
        assert len(dsx[i]) <= 14
        if last:
            for k2 in range(8):
                tg, cb = order[k2]
                mem.setdefault(k2 + 12, []).append(f"ds_write_b128 v{RWL[tg]}, {v(ACC(tg, cb), 4)} offset:{1024*cb}")
        gaps, left = fill(n, scal, mem, [(x, 1, 10 if i == 27 else 0) for x in vax[i]])
        gaps[n-1] += left
        if not last:
            w = vm.need(("A", i + 1), ("B", i + 1))
            ws_ = (f"vmcnt({w}) " if w is not None else "") + ("lgkmcnt(0)" if dsx[i] else "")
            if ws_: gaps[n-1].insert(0, "s_waitcnt " + ws_)
        emit_gaps(A, mf, gaps)
    for k2 in range(8, 15):
        tg, cb = order[k2]
        A(f"ds_write_b128 v{RWL[tg]}, {v(ACC(tg, cb), 4)} offset:{1024*cb}")
    st(s0 + 3)
    w = vm.need("E")
    A(f"s_waitcnt vmcnt({w}) lgkmcnt(0)" if w is not None else "s_waitcnt lgkmcnt(0)")
    A("s_barrier")
    for cb in range(5):
        for j in range(1, 4): A(f"ds_read_b128 {v(ACC(j, cb), 4)}, v{RW} offset:{(j-1)*5120 + 1024*cb}")
    T = 160
    def pk(op, d, x, y): A(f"{op} {v(d, 2)}, {v(x, 2)}, {v(y, 2)}")
    for cb in range(5):
        if o:
            for r in range(4):
                src = EX + 2*cb + (r >> 1)
                A(f"v_lshlrev_b32 v{T+4*cb+r}, 16, v{src}" if r % 2 == 0 else f"v_and_b32 v{T+4*cb+r}, 0xffff0000, v{src}")
        A(f"s_waitcnt lgkmcnt({3*(4-cb)})")
        for r in (0, 2):
            pk("v_pk_add_f32", ACC(0,cb)+r, ACC(0,cb)+r, ACC(1,cb)+r)
            pk("v_pk_add_f32", ACC(2,cb)+r, ACC(2,cb)+r, ACC(3,cb)+r)
        for r in (0, 2): pk("v_pk_add_f32", ACC(0,cb)+r, ACC(0,cb)+r, ACC(2,cb)+r)
        X = (T if o else EX) + 4*cb
        for r in (0, 2): A(f"v_pk_fma_f32 {v(X+r, 2)}, {v(EG+4*cb+r, 2)}, {v(ACC(0,cb)+r, 2)}, {v(X+r, 2)}")
        if o:
            for r in (0, 2): pk("v_pk_mul_f32", ACC(1,cb)+r, X+r, EH+4*cb+r)
            for p in range(2): A(f"v_cvt_pk_bf16_f32 v{T+20+2*cb+p}, v{ACC(1,cb)+2*p}, v{ACC(1,cb)+2*p+1}")
            if cb in (1, 3): A(f"buffer_store_dwordx4 {v(T+20+2*cb-2, 4)}, v{L16}, s[{SWS}:{SWS+3}], s{sY0} offen offset:{512*(cb-1)} sc1")
            if cb == 4: A(f"buffer_store_dwordx2 {v(T+28, 2)}, v{L16}, s[{SWS}:{SWS+3}], s{sY4} offen sc1")
            if cb == 0:
                pk("v_pk_add_f32", STT, X, X+2); pk("v_pk_mul_f32", STT+2, X, X)
                A(f"v_pk_fma_f32 {v(STT+2, 2)}, {v(X+2, 2)}, {v(X+2, 2)}, {v(STT+2, 2)}")
            else:
                for r in (0, 2):
                    pk("v_pk_add_f32", STT, STT, X+r)
                    A(f"v_pk_fma_f32 {v(STT+2, 2)}, {v(X+r, 2)}, {v(X+r, 2)}, {v(STT+2, 2)}")
        else:
            for p in range(2): A(f"v_cvt_pk_bf16_f32 v{T+2*cb+p}, v{X+2*p}, v{X+2*p+1}")
            A(f"buffer_store_dwordx2 {v(T+2*cb, 2)}, v{XV}, s[{SXO}:{SXO+3}], s{sR0 if cb < 4 else sR4} offen offset:{32*(cb & 3)}")
    if o:
        A(f"v_add_f32 v{STT}, v{STT}, v{STT+1}")
        A(f"v_add_f32 v{STT+1}, v{STT+2}, v{STT+3}")
        A(f"s_lshr_b32 s3, s{sCT}, 1"); A("s_lshl_b32 s3, s3, 8")
        for swp in ("v_permlane32_swap_b32", "v_permlane16_swap_b32"):
            A(f"v_mov_b32 v{STT+2}, v{STT}"); A(f"v_mov_b32 v{STT+3}, v{STT+1}"); A("s_nop 0")
            A(f"{swp} v{STT+2}, v{STT}"); A(f"{swp} v{STT+3}, v{STT+1}")
            A(f"v_add_f32 v{STT}, v{STT}, v{STT+2}"); A(f"v_add_f32 v{STT+1}, v{STT+1}, v{STT+3}")
        A(f"s_and_b32 s98, s{sCT}, 1"); A("s_lshl_b32 s98, s98, 3")
        A("s_add_u32 s3, s3, s98")
        A(f"s_lshl_b32 s98, s{sMY}, 10"); A("s_add_u32 s3, s3, s98"); A(f"s_add_u32 s3, s3, {WS_ST}")
        A("s_mov_b64 exec, 0xffff")
        A(f"buffer_store_dwordx2 {v(STT, 2)}, v{L16}, s[{SWS}:{SWS+3}], s3 offen sc1")
        A("s_mov_b64 exec, -1")
        for x in range(20): A(f"v_accvgpr_write_b32 a{X1S+x}, v{T+x}")

def GA(cb, tg): return (cb * 4 + tg) * 4
NR = 6
def BR(kk, tg): return 96 + (kk % NR) * 16 + tg * 4
def AB(kk, cb): return 192 + (kk & 1) * 32 + cb * 4
ORD = [0, 4, 1, 5, 2, 6, 3, 7]
def UU(cb): return 128 + 8 * ORD.index(cb)
ST2, MU, SG, W2A, B2V, PK = 192, 208, 212, 216, 220, 232
sB2, sS2, sH2, sT2 = 20, 21, 30, 23

def g3_setup():
    o_ = [f"s_mul_i32 s{sBO}, s{sTB}, {54*1024}", f"s_lshr_b32 s3, s{sM}, 2", f"s_add_u32 s{sBO}, s{sBO}, s3", f"s_add_u32 s{sBO}, s{sBO}, {WS_H2}"]
    for tg in range(4):
        o_ += [f"s_add_u32 s3, s{sWAVE}, {tg}", "s_and_b32 s3, s3, 3", f"s_mul_i32 s3, s3, {54*1024}", f"v_add_u32 v{BV+tg}, s3, v{L16}"]
    B = Asm(); srd(B, SXO, pOUT, 2048 * 640 * 2)
    return o_ + [x.strip() for x in B.lines]

def emit_g2(A, st, opt, s0):
    vm = VM()
    a3, _ = ks_loads(False, opt)
    def issue(x, tag): A.extend(x[0]); A(x[1]); vm.issue(tag)
    A.extend(g3_setup())
    A.extend(w2_base())
    for fb in range(4): A.extend(w2_addr(A, W2A + fb, str(fb)))
    A(f"s_lshl_b32 s3, s{sGTB}, 2")
    A(f"s_add_u32 s3, s3, s{sWAVE}")
    A("s_lshl_b32 s3, s3, 2")
    A(f"s_mul_i32 s{sB2}, s3, 20480")
    A(f"s_add_u32 s{sB2}, s{sB2}, {WS_Y}")
    for tg in range(4): A(f"v_add_u32 v{B2V+tg}, {tg*20480}, v{L16}")
    A(f"s_lshl_b32 s{sS2}, s3, 10")
    A(f"s_add_u32 s{sS2}, s{sS2}, {WS_ST}")
    A(f"s_mul_i32 s3, s3, {54*1024}")
    A(f"s_lshl_b32 s98, s{sFT}, 11")
    A("s_add_u32 s3, s3, s98")
    for tg in range(4): A(f"s_add_u32 s{sH2+tg}, s3, {WS_H2 + tg*54*1024}")
    def w_reads(kk):
        return [f"ds_read_b64_tr_b16 {a(AB(kk, cb) + 2*tt, 2)}, v{W2A + (cb & 3)} offset:{w2_off(kk)[1] + (cb >> 2)*4096 + tt*2048}"
                for cb in ORD for tt in range(2)]
    A.extend(w_reads(0))
    A(f"v_lshlrev_b32 v{KVV}, 2, v{L16}")
    A(f"v_and_b32 v{KVV}, 64, v{KVV}")
    A(f"v_add_u32 v{TBV}, 0x18000, v{MV}")
    A(f"s_lshl_b32 s3, s{sWAVE}, 7")
    A(f"v_add3_u32 v{KVV}, v{KVV}, v{TBV}, s3")
    A("s_and_b32 s3, s2, 7")
    A("s_lshl_b32 s3, s3, 8")
    A(f"s_add_u32 s3, s3, {WS_CNT + 256*CNT_2}")
    signal(A, 3, PZ, PT, "G1_sig")
    st(14)
    A("s_cmp_ge_u32 s2, 216")
    A("s_cbranch_scc1 G2_idle")
    for j in (3, 4):
        for n in range(8): issue(w2_dma(j, n), "W")
    A(f"s_lshl_b32 s3, s{sGTB}, 8")
    A(f"s_add_u32 s3, s3, {WS_CNT + 256*CNT_2}")
    st(s0)
    wait_group(A, 3, PZ, PT, 32, "G2_wait", pre="s_waitcnt vmcnt(0) lgkmcnt(0)")
    st(s0 + 1)
    def b_load(kk, tg):
        sc_ = [f"s_add_u32 s{sT2}, s{sB2}, {(kk >> 2)*4096}"] if (tg == 0 and kk % 4 == 0) else []
        return sc_, f"buffer_load_dwordx4 {a(BR(kk, tg), 4)}, v{B2V+tg}, s[{SWS}:{SWS+3}], s{sT2} offen offset:{(kk & 3)*1024} sc1"
    vm = VM()
    for kk in range(2):
        for tg in range(4): issue(b_load(kk, tg), f"B{kk}")
    for kk in range(12, 16): A.extend(ut_reads(kk, ("v", 128 + 8*(kk - 12))))
    A(f"v_add_u32 v{WU}, 0x10000, v{WU}")
    for tg in range(4): issue(([], f"buffer_load_dwordx4 {v(ST2+4*tg, 4)}, v{L16}, s[{SWS}:{SWS+3}], s{sS2} offen offset:{1024*tg} sc1"), "E")
    for kk in range(16, 20): A.extend(ut_reads(kk, ("v", 128 + 8*(kk - 12))))
    A("s_waitcnt lgkmcnt(0)")
    ml = [x for kk in range(12, 20) for x in ut_mfmas(kk, ("v", 128 + 8*(kk - 12)))]
    gp = [[] for _ in ml]
    for q in range(8):
        sc_, m = b_load(2 + q // 4, q % 4); gp[2*q] = sc_ + [m]; vm.issue(f"B{2 + q//4}")
    emit_gaps(A, ml, gp)
    for tg in range(4): issue(b_load(4, tg), "B4")
    A("s_nop 2")
    A(f"ds_write_b128 v{KVV}, {v(UTA, 4)}")
    A(f"ds_write_b128 v{KVV}, {v(UTA+4, 4)} offset:512")
    sched = {kk: [] for kk in range(20)}
    for kk in range(15):
        for tg in range(4): sched[kk].append((b_load(kk + 5, tg), f"B{kk+5}"))
    acount = {2: 3, 3: 3, 4: 3, 5: 3, 6: 3, 8: 3, 9: 2, 10: 3, 11: 2, 13: 3, 14: 3, 15: 4, 16: 5, 17: 5, 18: 5}
    al = [(a3(i, cb), ("A", i)) for i in range(14) for cb in range(5)]
    if opt.get("g3pf", 1):
        for kk, c in acount.items():
            for _ in range(c): sched[kk].append(al.pop(0))
    n_early = 70 - len(al)
    A(f"s_waitcnt vmcnt({vm.need('B0')})")
    st(s0 + 2)
    stats = []
    for tg in range(4): stats.append(ln_stats(A, ST2 + 4*tg, None, MU + tg, SG + tg))
    stats = [x for grp in zip(*stats) for x in grp if not x.startswith("s_nop")]
    K0 = 5
    for kk in range(20):
        cbs = ORD
        scal, mem, valu = {}, {}, []
        if kk in (K0 - 3, K0 - 2, K0 - 1):
            h = (len(stats) + 2) // 3; z = kk - (K0 - 3)
            valu = [(x, 2 if "sqrt" in x else 1) for x in stats[z*h:(z+1)*h]]
        corr = K0 <= kk < K0 + 8
        if corr:
            pos = kk - K0; cb = cbs[pos]
            for tg in range(4):
                for r in range(4): valu.append((f"v_fmac_f32 v{GA(cb, tg)+r}, v{MU+tg}, v{UU(cb)+r}", 1, 8))
                for r in range(4): valu.append((f"v_fmac_f32 v{GA(cb, tg)+r}, v{SG+tg}, v{UU(cb)+4+r}", 1, 8))
            cbs = ORD[pos:] + ORD[:pos]
        mf = [f"{MF} {v(GA(c2, tg), 4)}, {a(AB(kk, c2), 4)}, {a(BR(kk, tg), 4)}, {v(GA(c2, tg), 4) if kk else '0'}" for c2 in cbs for tg in range(4)]
        slots = [2, 7, 11, 15, 20, 24, 28]
        assert len(sched[kk]) <= len(slots)
        for g, ((sc_, m), tag) in zip(slots, sched[kk]):
            for z, x in enumerate(sc_): scal.setdefault(g - len(sc_) + z, []).append(x)
            mem[g] = [m]; vm.issue(tag)
        if kk < 19:
            rd = w_reads(kk + 1)
            if kk == 1:
                for cb in ORD: rd += [f"ds_read_b128 {v(UU(cb), 4)}, v{TBV} offset:{128*cb}", f"ds_read_b128 {v(UU(cb)+4, 4)}, v{TBV} offset:{128*cb+64}"]
            free = [g for g in range(0, 27) if g not in mem]
            per = 2 if (corr or kk == 1) else 1
            for i, x in enumerate(rd): mem.setdefault(free[i // per], []).append(x)
            if kk == 6: valu += [(f"v_subrev_u32 v{W2A+j}, 0x18000, v{W2A+j}", 1, 27) for j in range(4)]
            if kk == 14: valu += [(f"v_add_u32 v{W2A+j}, 0x10000, v{W2A+j}", 1, 27) for j in range(4)]
            gaps, left = fill(32, scal, mem, valu, start=8 if corr else 0)
            gaps[31] += left
            w = vm.need(f"B{kk+1}")
            gaps[30 if kk == 0 else 31].insert(0, f"s_waitcnt vmcnt({w}) lgkmcnt(0)" if w is not None else "s_waitcnt lgkmcnt(0)")
            if kk == 0: gaps[31].insert(0, "s_barrier")
            emit_gaps(A, mf, gaps)
        else:
            def epi(p, tg, pk):
                t = PK + 4*tg; ep = []
                for e in range(2):
                    fb = 2*p + e
                    for r in range(4): ep.append(f"v_max_f32 v{GA(fb, tg)+r}, 0, v{GA(fb, tg)+r}")
                    if pk:
                        for r in (0, 2): ep.append(f"v_pk_mul_f32 {v(GA(fb, tg)+r, 2)}, {v(GA(fb, tg)+r, 2)}, {v(GA(4+fb, tg)+r, 2)}")
                    else:
                        for r in range(4): ep.append(f"v_mul_f32 v{GA(fb, tg)+r}, v{GA(fb, tg)+r}, v{GA(4+fb, tg)+r}")
                    for z in range(2): ep.append(f"v_cvt_pk_bf16_f32 v{t+2*e+z}, v{GA(fb, tg)+2*z}, v{GA(fb, tg)+2*z+1}")
                return ep, f"buffer_store_dwordx4 {v(t, 4)}, v{L16}, s[{SWS}:{SWS+3}], s{sH2+tg} offen offset:{1024*p} sc1"
            e0, m0_ = epi(0, 0, False)
            gaps, left = fill(32, {}, {31: [m0_]}, [(x, 1) for x in e0], start=21)
            assert not left
            vm.issue("H")
            emit_gaps(A, mf, gaps)
            for p, tg in [(p, tg) for p in range(2) for tg in range(4)][1:]:
                e_, m_ = epi(p, tg, True); A.extend(e_); A(m_); vm.issue("H")
    st(s0 + 3)
    def gb(cb): return ([], f"buffer_load_dwordx4 {v(100+4*cb, 4)}, v{MV}, s[{SWS}:{SWS+3}], s{sF0 if cb < 4 else sF4} offen offset:{64*(cb & 3)}")
    npre = min(10, len(al))
    for _ in range(npre): issue(*al.pop(0))
    A(f"s_lshl_b32 s3, s{sGTB}, 8")
    A(f"s_add_u32 s3, s3, {WS_CNT + 256*CNT_3}")
    signal(A, 3, 0, 1, "G2_sig", vm.need("H"))
    A.label("G3_start")
    while al: issue(*al.pop(0))
    for x in range(20): A(f"v_accvgpr_read_b32 v{80+x}, a{X1S+x}")
    for cb in range(5): issue(gb(cb), "E")
    idle = Asm()
    idle.label("G2_idle")
    idle("s_waitcnt lgkmcnt(0)")
    for n in range(n_early + npre):
        sc_, m = a3(n // 5, n % 5); idle.extend(sc_); idle(m)
    idle("s_branch G3_start")
    return vm, idle

def gen_main(stamps, opt):
    A = Asm()
    def st(i):
        if stamps and i in stamps: stamp(A, stamps.index(i))
    A("s_cmp_ge_u32 s2, 256")
    A("s_cbranch_scc1 PK_end")
    if stamps: A("v_mov_b32 v255, 0")
    st(0)
    vm = emit_attn(A, st, opt)
    emit_ks(A, st, True, opt, 10, vm)
    vm, idle = emit_g2(A, st, opt, 20)
    emit_ks(A, st, False, opt, 30, vm)
    if stamps:
        st(34)
        A("s_waitcnt vmcnt(0)")
        st(35)
        stamp_out(A, 1, SWS, sWAVE, L16)
    A.label("PK_end")
    A("s_endpgm")
    A.lines += idle.lines
    emit_rare(A)
    A(".fill 4096, 4, 0xBF800000      ; keeps the code-prefetch loads inside .text")
    return dict(name="block_kernel", lines=A.lines, vgpr=512, accum=256, sgpr=102, grid=256, block=256, lds=163840)
```

```python
import sys
from k0 import gen_k0
from pk import gen_main
from common import *
def build(stamps=None, opt={}, final=False):
    hdr = ["; dev build"]
    if final: hdr = open("adaLN_cond__mha_block_cached__glu_gated_reglu__prompt.s.ref").read().split("; Override launch")[0].rstrip("\n").split("\n")
    return build_file(hdr, [gen_k0(bool(stamps), opt), gen_main(stamps, opt)])
STA = [0, 1, 2, 3, 8, 9, 4, 40, 41, 5, 42, 6, 10, 11, 12, 13, 14, 20, 21, 22, 23, 30, 31, 32, 33, 34, 35]
if __name__ == "__main__":
    out = sys.argv[1]; mode = sys.argv[2] if len(sys.argv) > 2 else ""
    opt = eval(sys.argv[3]) if len(sys.argv) > 3 else {}
    open(out, "w").write(build(stamps={"sa": STA}.get(mode), opt=opt, final=(mode == "final")))
```
